```python
import torch

def _softmax(x, axis=-1):
    return torch.softmax(x, dim=axis)
def _gelu(x):
    return torch.nn.functional.gelu(x, approximate="tanh")
def _silu(x):
    return torch.nn.functional.silu(x)
def _sigmoid(x):
    return torch.sigmoid(x)
def _layernorm(x, axis=-1, eps=1e-5):
    m = x.mean(dim=axis, keepdim=True)
    v = x.var(dim=axis, keepdim=True, unbiased=False)
    return (x - m) / torch.sqrt(v + eps)
def _scatter_add(tgt, idx, src, axis=0):
    return tgt.clone().index_add_(axis, idx, src)
def _segment_sum(src, seg, n):
    out = torch.zeros((n,) + src.shape[1:], dtype=src.dtype)
    return out.index_add_(0, seg, src)
def _pad(x, pw):
    flat = tuple(v for pair in reversed(pw) for v in pair)
    return torch.nn.functional.pad(x, flat)

kernel_name = 'gated_mix__linear_attn_block__sliding_local_dilated__prompt'

def setup_inputs():

    _w = (lambda a: (lambda t: t.to(torch.bfloat16) if t.is_floating_point() else t)(torch.as_tensor(a)))
    def _A_setup():
        B, S, D = 1, 2048, 640
        return {
            "x": _w((lambda *s: torch.randn(*s, dtype=torch.bfloat16) * 0.05)(B, S, D)),
            "wqkv": _w((lambda *s: torch.randn(*s, dtype=torch.bfloat16) * 1.6)(D, 3 * D)),
            "wo": _w((lambda *s: torch.randn(*s, dtype=torch.bfloat16) * 0.8)(D, D)),
        }
    _A_in = _A_setup()

    def _B_setup():
        B, S, D = 1, 2048, 640
        return {
            "x": _w((lambda *s: torch.randn(*s, dtype=torch.bfloat16) * 0.05)(B, S, D)),
            "wqkv": _w((lambda *s: torch.randn(*s, dtype=torch.bfloat16) * 0.8)(D, 3 * D)),
            "wo": _w((lambda *s: torch.randn(*s, dtype=torch.bfloat16) * 0.05)(D, D)),
        }
    _B_in = _B_setup()

    return {
        "A_x": _A_in["x"],
        "A_wqkv": _A_in["wqkv"],
        "A_wo": _A_in["wo"],
        "B_x": _B_in["x"],
        "B_wqkv": _B_in["wqkv"],
        "B_wo": _B_in["wo"],
        "gate_w": _w((lambda *s: torch.randn(*s, dtype=torch.bfloat16) * 0.05)(640) * 16.0),
    }

def reference(A_x, A_wqkv, A_wo, B_x, B_wqkv, B_wo, gate_w):
    def _A_ref(x, wqkv, wo):
        B, S, D = x.shape
        H = 32; Dh = D // H
        qkv = (lambda x, *d: x.permute(*d))((x @ wqkv).reshape(B, S, 3, H, Dh), 2, 0, 3, 1, 4)
        q, k, v = qkv[0], qkv[1], qkv[2]
        phi = lambda t: torch.where(t > 0, t + 1, torch.exp(t)) + 1e-6
        pq, pk = phi(q), phi(k)
        kv = torch.einsum("bhsd,bhse->bhde", pk, v)
        z = torch.einsum("bhsd->bhd", pk)
        num = torch.einsum("bhqd,bhde->bhqe", pq, kv)
        den = torch.einsum("bhqd,bhd->bhq", pq, z)[..., None] + 1e-6
        o = num / den
        return (lambda x, *d: x.permute(*d))(o, 0, 2, 1, 3).reshape(B, S, D) @ wo

    def _B_ref(x, wqkv, wo):
        B, S, D = x.shape
        H = 32; Dh = D // H
        W, dil = 8, 2
        qkv = (lambda x, *d: x.permute(*d))((x @ wqkv).reshape(B, S, 3, H, Dh), 2, 0, 3, 1, 4)
        q, k, v = qkv[0], qkv[1], qkv[2]
        scale = Dh ** -0.5
        pos = torch.arange(S)
        off = torch.arange(W) * dil
        idx = pos[:, None] - off[None, :]
        mask = idx >= 0
        idx_c = torch.where(mask, idx, 0).reshape(-1)
        kg = k[:, :, idx_c, :].reshape(B, H, S, W, Dh)
        vg = v[:, :, idx_c, :].reshape(B, H, S, W, Dh)
        logits = torch.einsum("bhsd,bhswd->bhsw", q, kg) * scale
        logits = torch.where(mask[None, None, :, :], logits, -1e9)
        attn = _softmax(logits, axis=-1)
        o = torch.einsum("bhsw,bhswd->bhsd", attn, vg)
        return (lambda x, *d: x.permute(*d))(o, 0, 2, 1, 3).reshape(B, S, D) @ wo

    x = A_x
    g = _sigmoid((x * gate_w).sum(-1, keepdims=True))
    a = _A_ref(x, A_wqkv, A_wo)
    b = _B_ref(x, B_wqkv, B_wo)
    return g * a + (1 - g) * b
```

```python
import re

def _regs(tok):
    tok = tok.strip()
    m = re.fullmatch(r'([vas])(\d+)', tok)
    if m:
        return {(m.group(1), int(m.group(2)))}
    m = re.fullmatch(r'([vas])\[(\d+):(\d+)\]', tok)
    if m:
        return {(m.group(1), i) for i in range(int(m.group(2)), int(m.group(3)) + 1)}
    if tok in ('vcc', 'vcc_lo', 'vcc_hi'):
        return {('x', 'vcc')}
    if tok in ('exec', 'exec_lo', 'exec_hi'):
        return {('x', 'exec')}
    if tok == 'm0':
        return {('x', 'm0')}
    return set()

TRANS = ('v_exp_f32', 'v_log_f32', 'v_rcp_f32', 'v_rsq_f32', 'v_sqrt_f32', 'v_sin_f32', 'v_cos_f32')

class Ins:
    __slots__ = ('text', 'op', 'kind', 'dst', 'src', 'srcC', 'states', 'wide_store', 'lds_dma')
    def __init__(self, text):
        self.text = text
        self.dst = set(); self.src = set(); self.srcC = set()
        self.states = 1
        self.wide_store = False
        self.lds_dma = False
        t = text.split(';')[0].strip()
        if not t or t.endswith(':') or t.startswith('.'):
            self.op = None; self.kind = 'none'; self.states = 0
            return
        parts = t.split(None, 1)
        op = parts[0]
        self.op = op
        rest = parts[1] if len(parts) > 1 else ''
        rest = re.sub(r'\s(op_sel\w*|neg_\w+|quad_perm):\[[^\]]*\]', '', rest)
        ops = [o.strip() for o in rest.split(',')] if rest else []
        mods = ''
        if ops:
            last = ops[-1].split(None, 1)
            ops[-1] = last[0]
            mods = last[1] if len(last) > 1 else ''
        base = op.replace('_e32', '').replace('_e64', '')
        mo = re.search(r'offset:(\d+)', mods)
        if mo:
            lim = 65535 if base.startswith('ds_') else 4095
            assert int(mo.group(1)) <= lim, "offset out of range: " + text
        R = _regs
        if base.startswith('v_mfma'):
            self.kind = 'mfma'
            self.dst = R(ops[0]); self.src = R(ops[1]) | R(ops[2]); self.srcC = R(ops[3])
        elif base.startswith('v_cmp'):
            self.kind = 'valu'
            self.dst = R(ops[0])
            for o in ops[1:]: self.src |= R(o)
        elif base.startswith('v_permlane'):
            self.kind = 'permlane'
            self.dst = R(ops[0]) | R(ops[1]); self.src = set(self.dst)
        elif base in ('v_readfirstlane_b32', 'v_readlane_b32'):
            self.kind = 'readlane'
            self.dst = R(ops[0])
            for o in ops[1:]: self.src |= R(o)
        elif base.startswith('v_'):
            self.kind = 'trans' if base in TRANS else 'valu'
            self.dst = R(ops[0])
            for o in ops[1:]: self.src |= R(o)
            if base.startswith('v_cndmask') and len(ops) == 3: self.src |= {('x', 'vcc')}
            if base.startswith('v_fmac') or base.startswith('v_pk_fmac') or base.startswith('v_dot2c') or base.startswith('v_mac'):
                self.src |= self.dst
            if '_co_' in base:
                pass
        elif base.startswith('ds_read') or base.startswith('ds_bpermute') or base.startswith('ds_swizzle'):
            self.kind = 'ds'
            self.dst = R(ops[0])
            for o in ops[1:]: self.src |= R(o)
        elif base.startswith('ds_'):
            self.kind = 'ds'
            for o in ops: self.src |= R(o)
        elif base.startswith('buffer_load') or base.startswith('global_load'):
            self.kind = 'vmem'
            if re.search(r'\blds\b', mods) or 'load_lds' in base:
                self.lds_dma = True
                for o in ops: self.src |= R(o)
                self.src |= {('x', 'm0')}
            else:
                self.dst = R(ops[0])
                for o in ops[1:]: self.src |= R(o)
        elif base.startswith('buffer_') or base.startswith('global_'):
            self.kind = 'vmem'
            for o in ops: self.src |= R(o)
            if 'x4' in base or 'x3' in base:
                self.wide_store = True
                self.dst = set()
                self.srcC = R(ops[0]) if base.startswith('buffer_') else R(ops[1])
        elif base == 's_nop':
            self.kind = 'salu'; self.states = int(ops[0], 0) + 1
        elif base.startswith('s_'):
            self.kind = 'salu'
            nodst = ('s_cmp', 's_waitcnt', 's_barrier', 's_branch', 's_cbranch', 's_endpgm', 's_setprio', 's_sleep', 's_bitcmp', 's_setreg')
            if not any(base.startswith(x) for x in nodst):
                self.dst = R(ops[0]) if ops else set()
                for o in ops[1:]: self.src |= R(o)
                if 'saveexec' in base: self.dst |= {('x', 'exec')}
            else:
                for o in ops: self.src |= R(o)
        else:
            raise ValueError("unknown instruction: " + text)

def is_valu(k): return k in ('valu', 'trans', 'permlane', 'readlane')

def need(prev, cur):
    n = 0
    pk, ck = prev.kind, cur.kind
    creads = cur.src | cur.srcC if ck == 'mfma' else set(cur.src) | (cur.srcC if ck == 'vmem' else set())
    vg = lambda s: {r for r in s if r[0] in 'va'}
    sg = lambda s: {r for r in s if r[0] == 's' or r == ('x', 'vcc')}
    if is_valu(pk):
        w = vg(prev.dst)
        if w:
            if ck == 'mfma' and (w & creads): n = max(n, 2)
            if ck == 'permlane' and (w & cur.src): n = max(n, 2)
            if ck == 'readlane' and (w & cur.src): n = max(n, 1)
            if pk == 'trans' and is_valu(ck) and (w & cur.src): n = max(n, 1)
            if 'dpp' in cur.text and (w & cur.src): n = max(n, 2)
        ws = sg(prev.dst)
        if ws:
            if is_valu(ck) and (ws & cur.src): n = max(n, 4 if ck == 'readlane' else 2)
            if ck == 'vmem' and (ws & cur.src): n = max(n, 5)
            if ck == 'ds' and (ws & cur.src): n = max(n, 5)
    if pk == 'mfma':
        d = prev.dst
        if ck == 'mfma':
            if d & cur.src: n = max(n, 8)
            if (d & cur.srcC) and cur.srcC != d: n = max(n, 6)
            if (d & cur.dst) and cur.dst != d: n = max(n, 6)
        else:
            if d & (creads | cur.dst): n = max(n, 8)
        if is_valu(ck) and (prev.srcC & cur.dst): n = max(n, 3)
    if pk == 'salu' and ('x', 'm0') in prev.dst and cur.lds_dma: n = max(n, 1)
    if pk == 'vmem' and prev.wide_store and (prev.srcC & cur.dst):
        n = max(n, 2 if is_valu(ck) else 1)
    return n

class Asm:
    def __init__(self):
        self.lines = []
        self.hist = []
    def raw(self, text):
        self.lines.append(Ins(text)) if (text.strip().endswith(':') or text.strip().startswith('.') or text.strip().startswith(';') or not text.strip()) else self.I(text)
    def comment(self, text):
        i = Ins(''); i.text = '; ' + text; self.lines.append(i)
    def label(self, name):
        self.lines.append(Ins(name + ':'))
    def I(self, text):
        ins = Ins(text)
        dist = 0
        req = 0
        for p in reversed(self.hist):
            r = need(p, ins)
            if r > dist: req = max(req, r - dist)
            dist += p.states
            if dist >= 10: break
        while req > 0:
            k = min(req, 8)
            nop = Ins(f's_nop {k-1}')
            self.lines.append(nop); self.hist.append(nop)
            req -= k
        self.lines.append(ins); self.hist.append(ins)
        if len(self.hist) > 24: self.hist = self.hist[-24:]
        return ins
    def __call__(self, text):
        for l in text.strip('\n').split('\n'):
            l = l.strip()
            if not l: continue
            if l.endswith(':') or l.startswith('.') or l.startswith(';'):
                i = Ins(''); i.text = l; self.lines.append(i)
            else:
                self.I(l)
    def flush_hazards(self):
        self.I('s_nop 7'); self.I('s_nop 1')
    def text(self):
        return '\n'.join(i.text if (i.kind == 'none') else '    ' + i.text for i in self.lines) + '\n'

def vr(base, n=1, p='v'):
    return f'{p}{base}' if n == 1 else f'{p}[{base}:{base+n-1}]'
def ar(base, n=1):
    return vr(base, n, 'a')
def sr(base, n=1):
    return vr(base, n, 's')
```

```python
from asmfw import *
import gen as G
from gen import (K2, WS_F0, WS_F1, WS_KV, WS_GATE, WS_WP, WS_SIZE, EPS, f2u, lanemask, set_mask, srd, VM)

K2_LDS = 61440

S_W, S_RB, S_CG = 3, 4, 5
S_T0, S_T1, S_T2, S_T3 = 8, 9, 10, 11
SRD_WS, SRD_OUT = 12, 16
S_PQ = 20
S_OB = 24
S_WPA, S_WPB = 28, 29
S_KV = 30
S_GT = 31
S_OUT = 32
S_RT = 36
SM_GE = {1: 40, 2: 42, 3: 44}
S_TMP = 48
V_L16, V_L16B, V_LANE = 1, 2, 3
V_KOFF = 4
V_G = 20
V_KV = 24
V_TMP = 88
V_OA = 152
V_X = 232
V_ACC = 24
V_ACCB = 152
V_MISC = 104
A_PQ = 0
A_WPA = 80
A_WPB = 180

def gen_k2(A):
    vm = VM()
    WSD = f"s[{SRD_WS}:{SRD_WS+3}]"
    OUTD = f"s[{SRD_OUT}:{SRD_OUT+3}]"
    sm = lambda s: f"s[{s}:{s+1}]"
    A(f".globl {K2}\n.p2align 8\n.type {K2},@function\n{K2}:")
    A("s_cmp_ge_u32 s2, 256")
    A("s_cbranch_scc1 L2_end")
    A("s_load_dwordx2 s[32:33], s[0:1], 56")
    A("s_load_dwordx2 s[34:35], s[0:1], 72")
    A(f"s_and_b32 s{S_T0}, s2, 7")
    A(f"s_lshr_b32 s{S_T1}, s2, 3")
    A(f"s_and_b32 s{S_T2}, s{S_T0}, 3"); A(f"s_lshl_b32 s{S_T2}, s{S_T2}, 3"); A(f"s_and_b32 s{S_T3}, s{S_T1}, 7")
    A(f"s_add_u32 s{S_RB}, s{S_T2}, s{S_T3}")
    A(f"s_lshr_b32 s{S_T2}, s{S_T0}, 2"); A(f"s_lshl_b32 s{S_T2}, s{S_T2}, 2"); A(f"s_lshr_b32 s{S_T3}, s{S_T1}, 3")
    A(f"s_add_u32 s{S_CG}, s{S_T2}, s{S_T3}")
    A("v_lshrrev_b32 v4, 6, v0")
    A(f"v_and_b32 v{V_LANE}, 63, v0")
    A(f"v_readfirstlane_b32 s{S_W}, v4")
    A(f"v_lshlrev_b32 v{V_L16}, 4, v{V_LANE}")
    A(f"v_add_u32 v{V_L16B}, 4096, v{V_L16}")
    A(f"s_mul_i32 s{S_T0}, s{S_RB}, 81920"); A(f"s_mul_i32 s{S_T1}, s{S_W}, 5120"); A(f"s_add_u32 s{S_T0}, s{S_T0}, s{S_T1}")
    for p in range(4):
        A(f"s_add_u32 s{S_RT+p}, s{S_W}, {p+1}"); A(f"s_and_b32 s{S_RT+p}, s{S_RT+p}, 3")
        A(f"s_mul_i32 s{S_T1}, s{S_RT+p}, 20480")
        A(f"s_add_u32 s{S_PQ+p}, s{S_T0}, s{S_T1}")
        A(f"s_add_u32 s{S_OB+p}, s{S_PQ+p}, {WS_F1}")
    A(f"s_mul_i32 s{S_T0}, s{S_CG}, 102400"); A(f"s_mul_i32 s{S_T1}, s{S_W}, 25600"); A(f"s_add_u32 s{S_T0}, s{S_T0}, s{S_T1}")
    A(f"s_add_u32 s{S_WPA}, s{S_T0}, {WS_WP}")
    A(f"s_add_u32 s{S_WPB}, s{S_WPA}, 819200")
    A(f"s_lshl_b32 s{S_KV}, s{S_W}, 14"); A(f"s_add_u32 s{S_KV}, s{S_KV}, {WS_KV}")
    A("s_waitcnt lgkmcnt(0)")
    srd(A, SRD_WS, 34, 35, WS_SIZE)
    srd(A, SRD_OUT, 32, 33, 2621440)

    def ld_frag(dst, sbase, k, tag):
        if k < 4: A(f"buffer_load_dwordx4 {dst}, v{V_L16}, {WSD}, s{sbase} offen offset:{1024*k}")
        else:     A(f"buffer_load_dwordx4 {dst}, v{V_L16B}, {WSD}, s{sbase} offen")
        vm.issue(tag)
    def pq_load(p, ul): ld_frag(ar(A_PQ + 20*p + 4*ul, 4), S_PQ + p, ul, f"pq{p}_{ul}")
    def ob_load(p, s):  ld_frag(ar(A_PQ + 20*p + 4*s, 4), S_OB + p, s, f"ob{p}_{s}")
    def wpb_reg(s, ct):
        n = 5 * s + ct
        return ar(A_WPB + 4*n, 4) if n < 19 else vr(V_X + 4*(n - 19), 4)
    def wpa_reg(s, ct): return ar(A_WPA + 4*(5*s + ct), 4)
    for s in range(5):
        A(f"s_add_u32 s{S_TMP+s}, s{S_WPA}, {5120*s}")
        A(f"s_add_u32 s{S_TMP+5+s}, s{S_WPB}, {5120*s}")
    def wpa_load(s, ct): ld_frag(wpa_reg(s, ct), S_TMP + s, ct, f"wa{s}_{ct}")
    def wpb_load(s, ct): ld_frag(wpb_reg(s, ct), S_TMP + 5 + s, ct, f"wb{s}_{ct}")

    for ul in range(3):
        for p in range(4): pq_load(p, ul)
    for h, s in SM_GE.items(): set_mask(A, s, lanemask(lambda l: (l >> 4) >= h))
    t = V_TMP
    i_, g16, r1, r2, big = t, t+1, t+2, t+3, t+4
    A(f"v_and_b32 v{i_}, 15, v{V_LANE}")
    A(f"v_and_b32 v{g16}, 48, v{V_LANE}")
    A(f"v_and_b32 v{r1}, 3, v{i_}"); A(f"v_lshlrev_b32 v{r1}, 6, v{r1}")
    A(f"v_lshrrev_b32 v{r2}, 2, v{i_}")
    A(f"v_lshl_add_u32 v{r1}, v{r2}, 4, v{r1}")
    A(f"v_mov_b32 v{big}, 0x400000")
    A(f"v_lshl_add_u32 v{r2}, v{r2}, 4, 256" if False else f"v_lshlrev_b32 v{r2}, 4, v{r2}")
    A(f"v_add_u32 v{r2}, 256, v{r2}")
    set_mask(A, S_TMP + 10, lanemask(lambda l: (l & 3) == 1))
    set_mask(A, S_TMP + 12, lanemask(lambda l: (l & 3) >= 2))
    A(f"v_mov_b32 v{t+5}, 320")
    A(f"v_cndmask_b32 v{r2}, v{r2}, v{t+5}, {sm(S_TMP+10)}")
    A(f"v_cndmask_b32 v{r2}, v{r2}, v{big}, {sm(S_TMP+12)}")
    def koff(kind, h): return V_KOFF + 4 * kind + h
    for h in range(4):
        A(f"v_subrev_u32 v{t+6}, {16*h}, v{g16}") if h else A(f"v_mov_b32 v{t+6}, v{g16}")
        A(f"v_add_u32 v{t+7}, {336*(4-h)}, v{g16}")
        for R, k0 in ((r1, 0), (r2, 2)):
            lo, hi = koff(k0, h), koff(k0 + 1, h)
            A(f"v_mad_u32_u24 v{lo}, v{R}, {4-h}, v{t+6}")
            if h > 0: A(f"v_cndmask_b32 v{lo}, v{big}, v{lo}, {sm(SM_GE[h])}")
            A(f"v_mad_u32_u24 v{hi}, v{R}, {h+1}, v{t+7}")
            if h < 3: A(f"v_cndmask_b32 v{hi}, v{hi}, v{big}, {sm(SM_GE[h+1])}")
    def kv_reg(hh, h, kind): return V_KV + 64 * hh + 16 * h + 4 * kind
    def kv_loads(hh):
        for h in range(4):
            A(f"s_add_u32 s{S_T0}, s{S_KV}, {(4*hh + h) * 2048}")
            for kind in range(4):
                A(f"buffer_load_dwordx4 {vr(kv_reg(hh, h, kind), 4)}, v{koff(kind, h)}, {WSD}, s{S_T0} offen")
                vm.issue(f"kv{hh}_{h}")
    A(f"s_lshl_b32 s{S_GT}, s{S_RB}, 8"); A(f"s_add_u32 s{S_GT}, s{S_GT}, {WS_GATE}")
    A(f"v_lshlrev_b32 v{t+8}, 2, v{i_}")
    for p in range(4):
        A(f"s_lshl_b32 s{S_T0}, s{S_RT+p}, 6"); A(f"s_add_u32 s{S_T0}, s{S_T0}, s{S_GT}")
        A(f"buffer_load_dword v{V_G+p}, v{t+8}, {WSD}, s{S_T0} offen"); vm.issue(f"g{p}")
    kv_loads(0)
    kv_loads(1)
    for ul in range(3, 5):
        for p in range(4): pq_load(p, ul)
    wa_list = [(s, ct) for s in range(5) for ct in range(5)]
    for (s, ct) in wa_list[:7]: wpa_load(s, ct)
    wa_rest = wa_list[7:]

    def wait(tag):
        n = min(vm.n_after(tag), 63)
        A(f"s_waitcnt vmcnt({n})")

    def kvp(hh, h, sec): return V_KV + 32 * hh + 8 * h + 4 * sec
    def cvt(hh, h):
        src = V_KV + 64 * hh + 16 * h
        dst = V_KV + 32 * hh + 8 * h
        return [f"v_cvt_pk_bf16_f32 v{dst+k}, v{src+2*k}, v{src+2*k+1}" for k in range(8)]
    CIN = V_X
    A(f"v_mov_b32 v{CIN}, 0"); A(f"v_mov_b32 v{CIN+1}, 0x{f2u(EPS):x}"); A(f"v_mov_b32 v{CIN+2}, 0"); A(f"v_mov_b32 v{CIN+3}, 0")
    for h in range(4):
        wait(f"kv0_{h}")
        for x in cvt(0, h): A(x)
    for h in range(4):
        wait(f"kv1_{h}")
        for x in cvt(1, h): A(x)
    def oc_mfma(hh, p, ts):
        out = []
        for h in range(4):
            B = ar(A_PQ + 20*p + 2*(5*hh + h), 4)
            D1 = V_TMP + 32*ts + 4*h; D2 = V_TMP + 32*ts + 16 + 4*h
            out.append(f"v_mfma_f32_16x16x32_bf16 {vr(D2,4)}, {vr(kvp(hh,h,1),4)}, {B}, {vr(CIN,4)}")
            out.append(f"v_mfma_f32_16x16x32_bf16 {vr(D1,4)}, {vr(kvp(hh,h,0),4)}, {B}, 0")
        return out
    def oc_valu(hh, p, ts):
        out = []
        D1 = lambda h: V_TMP + 32*ts + 4*h
        D2 = lambda h: V_TMP + 32*ts + 16 + 4*h
        O = V_OA + 20*p + 10*hh
        for h in range(4): out.append(f"v_rcp_f32 v{D2(h)+2}, v{D2(h)+1}")
        for h in range(4): out.append(f"v_mul_f32 v{D2(h)+2}, v{D2(h)+2}, v{V_G+p}")
        for h in range(4):
            out.append(f"v_pk_mul_f32 {vr(D1(h),2)}, {vr(D1(h),2)}, {vr(D2(h)+2,2)} op_sel_hi:[1,0]")
            out.append(f"v_pk_mul_f32 {vr(D1(h)+2,2)}, {vr(D1(h)+2,2)}, {vr(D2(h)+2,2)} op_sel_hi:[1,0]")
            out.append(f"v_mul_f32 v{D2(h)}, v{D2(h)}, v{D2(h)+2}")
        for h in range(4):
            out.append(f"v_cvt_pk_bf16_f32 v{O+2*h}, v{D1(h)}, v{D1(h)+1}")
            out.append(f"v_cvt_pk_bf16_f32 v{O+2*h+1}, v{D1(h)+2}, v{D1(h)+3}")
        out.append(f"v_cvt_pk_bf16_f32 v{O+8}, v{D2(0)}, v{D2(1)}")
        out.append(f"v_cvt_pk_bf16_f32 v{O+9}, v{D2(2)}, v{D2(3)}")
        return out
    groups = [(hh, p) for hh in range(2) for p in range(4)]
    wait("pq3_2")
    pend = []
    for n, (hh, p) in enumerate(groups):
        if n == 4: wait("pq3_4")
        mf = oc_mfma(hh, p, n & 1)
        fi = 0
        for m in mf:
            A(m)
            for _ in range(4):
                if fi < len(pend): A(pend[fi]); fi += 1
            if wa_rest:
                s, ct = wa_rest.pop(0); wpa_load(s, ct)
        while fi < len(pend): A(pend[fi]); fi += 1
        pend = oc_valu(hh, p, n & 1)
    for x in pend: A(x)
    while wa_rest:
        s, ct = wa_rest.pop(0); wpa_load(s, ct)
    blist = []
    for s in range(5):
        for ct in range(5): blist.append(('w', s, ct))
        blist.append(('o', 0, s)); blist.append(('o', 1, s))
    for p in (2, 3):
        for s in range(5): blist.append(('o', p, s))
    def issue_b(n=1):
        for _ in range(n):
            if blist:
                k, a, b = blist.pop(0)
                if k == 'w': wpb_load(a, b)
                else: ob_load(a, b)
    OMG = V_MISC
    V_LW, V_LR, V_ST = V_MISC + 8, V_MISC + 9, V_MISC + 10
    for p in range(4):
        A(f"v_sub_f32 v{OMG+2*p}, 1.0, v{V_G+p}")
    def acc(p, ct): return V_ACC + 20*p + 4*ct
    nissued = 0
    for s in range(5):
        wait(f"wa{s}_4")
        for p in range(4):
            for ct in range(5):
                a = vr(acc(p, ct), 4)
                A(f"v_mfma_f32_16x16x32_bf16 {a}, {wpa_reg(s, ct)}, {vr(V_OA + 20*p + 4*s, 4)}, {'0' if s == 0 else a}")
                if len(vm.ops) - 0 >= 0: issue_b(1)
    issue_b(100)
    A(f"v_mov_b32 v{V_LW}, v{V_L16}")
    A(f"s_mul_i32 s{S_T0}, s{S_W}, 15360")
    A(f"v_add_u32 v{V_LR}, s{S_T0}, v{V_L16}")
    A(f"v_and_b32 v{V_ST}, 15, v{V_LANE}"); A(f"v_mul_u32_u24 v{V_ST}, 1280, v{V_ST}")
    A(f"v_lshrrev_b32 v{V_ST+1}, 4, v{V_LANE}"); A(f"v_lshl_add_u32 v{V_ST}, v{V_ST+1}, 3, v{V_ST}")
    A(f"s_lshl_b32 s{S_T0}, s{S_RB}, 2"); A(f"s_add_u32 s{S_T0}, s{S_T0}, s{S_W}"); A(f"s_mul_i32 s{S_OUT}, s{S_T0}, 20480")
    A(f"s_mul_i32 s{S_T0}, s{S_CG}, 160"); A(f"s_add_u32 s{S_OUT}, s{S_OUT}, s{S_T0}")
    for p in range(3):
        A(f"s_mul_i32 s{S_TMP+16+p}, s{S_RT+p}, 15360"); A(f"s_add_u32 s{S_TMP+16+p}, s{S_TMP+16+p}, {p*5120}")
    def accb(p, ct): return V_ACCB + 20*p + 4*ct
    def b_mfmas(ps, s):
        out = []
        for p in ps:
            for ct in range(5):
                a = vr(accb(p, ct), 4)
                out.append(f"v_mfma_f32_16x16x32_bf16 {a}, {wpb_reg(s, ct)}, {ar(A_PQ + 20*p + 4*s, 4)}, {'0' if s == 0 else a}")
        return out
    def combine(p):
        out = []
        for ct in range(5):
            for k in (0, 2):
                x = vr(acc(p, ct) + k, 2)
                out.append(f"v_pk_fma_f32 {x}, {vr(accb(p, ct) + k, 2)}, {vr(OMG + 2*p, 2)}, {x} op_sel_hi:[1,0,1]")
        return out
    def writes(p):
        out = [f"v_add_u32 v{V_LW+3+p}, s{S_TMP+16+p}, v{V_L16}"]
        for ct in range(5):
            out.append(f"ds_write_b128 v{V_LW+3+p}, {vr(acc(p, ct), 4)} offset:{1024*ct}")
        return out
    for s in range(5):
        wait(f"ob1_{s}")
        for m in b_mfmas((0, 1), s): A(m)
    fill = combine(0) + writes(0) + combine(1) + writes(1)
    for s in range(5):
        wait(f"ob2_{s}")
        for m in b_mfmas((2,), s):
            A(m)
            for _ in range(2):
                if fill: A(fill.pop(0))
    for x in fill: A(x)
    for x in combine(2) + writes(2): A(x)
    A("s_waitcnt lgkmcnt(0)")
    A("s_barrier")
    RD = V_ACCB
    rds = [f"ds_read_b128 {vr(RD + 20*sl + 4*ct, 4)}, v{V_LR} offset:{(sl*5 + ct)*1024}" for sl in range(3) for ct in range(5)]
    for s in range(5):
        wait(f"ob3_{s}")
        for m in b_mfmas((3,), s):
            A(m)
            for _ in range(1):
                if rds: A(rds.pop(0))
    for x in rds: A(x)
    A("s_waitcnt lgkmcnt(0)")
    for sl in range(3):
        for ct in range(5):
            for k in (0, 2):
                x = vr(acc(3, ct) + k, 2)
                A(f"v_pk_add_f32 {x}, {x}, {vr(RD + 20*sl + 4*ct + k, 2)}")
    for x in combine(3): A(x)
    for ct in range(5):
        a = acc(3, ct)
        A(f"v_cvt_pk_bf16_f32 v{a}, v{a}, v{a+1}")
        A(f"v_cvt_pk_bf16_f32 v{a+1}, v{a+2}, v{a+3}")
        A(f"buffer_store_dwordx2 {vr(a, 2)}, v{V_ST}, {OUTD}, s{S_OUT} offen offset:{32*ct}")
    A("L2_end:")
    A("s_endpgm")
```

```python
import sys, struct
from asmfw import *

NAME = "gated_mix__linear_attn_block__sliding_local_dilated__prompt"
K1 = NAME + "_kernel"
K2 = NAME + "_p2_kernel"

def f2u(x): return struct.unpack('<I', struct.pack('<f', x))[0]

WS_F0   = 0
WS_F1   = 2621440
WS_KV   = 0x500000
WS_GATE = 0x510000
WS_HALO = 0x520000
WS_WP   = 0x600000
WS_SIZE = 0x800000

L_W   = 0
L_X   = 81920
L_GW  = 147456
L_KREG = L_X
L_VREG = L_X + 80 * 272
L_UNIT0 = 129536
L_UNIT1 = L_UNIT0 + 8192
L_HALO = L_X
K1_LDS = 163840

LOG2E = 1.4426950408889634
EPS = 1e-6

def lanemask(fn):
    m = 0
    for l in range(64):
        if fn(l): m |= 1 << l
    return m

class VM:
    def __init__(self): self.ops = []
    def issue(self, tag): self.ops.append(tag)
    def n_after(self, tag):
        idx = max(i for i, t in enumerate(self.ops) if t == tag)
        return len(self.ops) - 1 - idx

def set_mask(A, s, m):
    A(f"s_mov_b32 s{s}, 0x{m & 0xffffffff:x}")
    A(f"s_mov_b32 s{s+1}, 0x{(m >> 32) & 0xffffffff:x}")

def srd(A, s, plo, phi, size):
    A(f"s_mov_b32 s{s}, s{plo}")
    A(f"s_mov_b32 s{s+1}, s{phi}")
    A(f"s_mov_b32 s{s+2}, {size}")
    A(f"s_mov_b32 s{s+3}, 0x20000")

def interleave(A, mfmas, fillers, per=3):
    fi = 0
    for m in mfmas:
        A(m)
        for _ in range(per):
            if fi < len(fillers):
                A(fillers[fi]); fi += 1
    while fi < len(fillers):
        A(fillers[fi]); fi += 1

S_BR, S_RB, S_HG, S_WV, S_ROT = 3, 4, 5, 6, 7
SRD_W, SRD_X, SRD_WS, SRD_DBG, SRD_WOA, SRD_WOB, SRD_GW = 36, 40, 44, 48, 52, 56, 60
S_KW, S_KX, S_B1, S_B2, S_LW, S_LX, S_SO = 64, 65, 66, 67, 68, 69, 70
S_T0, S_T1, S_T2, S_T3 = 8, 9, 10, 11
SM_PAR, SM_C0, SM_C1, SM_GE1, SM_GE2, SM_GE3 = 72, 74, 76, 78, 80, 82
S_C1 = 84
S_C2 = 86
S_U0 = 88; S_U1 = 89
V_WOFF = 10
V_XOFF = 15
V_WRD, V_WRD2, V_XRD0, V_XRD1 = 19, 20, 21, 22
V_LANE = 23
V_INIT = 24
V_KACC, V_VACC, V_QACC = 32, 72, 112
V_WF = 152
V_M = 232

def k1_main(A, vm, br):
    isA = br == 'A'
    def kacc(rt, t): return (V_KACC + 8 * t + 4 * rt) if isA else (V_KACC + 20 * rt + 4 * t)
    def vacc(rt, t): return V_VACC + 8 * t + 4 * rt
    def qacc(rt, t): return V_QACC + 20 * rt + 4 * t
    def xfrag(P, rt): return ar((2 * P + rt) * 4, 4)
    def wf(hf, c): return V_WF + 40 * hf + 4 * c

    def dma_slot(sig):
        out = []
        buf = sig % 4
        if sig < 10:
            out.append(f"s_add_u32 s{S_SO}, s{S_KW}, s{S_B1}")
            out.append(f"s_add_u32 m0, s{S_LW}, {buf * 20480}")
            for i in range(4):
                out.append((f"buffer_load_dwordx4 v{V_WOFF+i}, s[{SRD_W}:{SRD_W+3}], s{S_SO} offen offset:{1024*i} lds", f"s{sig}"))
            out.append(f"s_add_u32 m0, s{S_LW}, {buf * 20480 + 4096}")
            out.append((f"buffer_load_dwordx4 v{V_WOFF+4}, s[{SRD_W}:{SRD_W+3}], s{S_SO} offen lds", f"s{sig}"))
            out.append(f"s_add_u32 m0, s{S_LX}, {buf * 16384}")
            for i in range(4):
                out.append((f"buffer_load_dwordx4 v{V_XOFF+i}, s[{SRD_X}:{SRD_X+3}], s{S_KX} offen offset:{1024*i} lds", f"s{sig}"))
            out.append(f"s_add_u32 s{S_KW}, s{S_KW}, 245760")
            out.append(f"s_cmp_eq_u32 s{S_KW}, 2457600")
            out.append(f"s_cselect_b32 s{S_KW}, 0, s{S_KW}")
            out.append(f"s_add_u32 s{S_KX}, s{S_KX}, 128")
            out.append(f"s_cmp_eq_u32 s{S_KX}, 1280")
            out.append(f"s_cselect_b32 s{S_KX}, 0, s{S_KX}")
        else:
            out.append(f"s_add_u32 s{S_SO}, s{S_KW}, s{S_B2}")
            out.append(f"s_add_u32 m0, s{S_LW}, {buf * 20480}")
            for i in range(4):
                out.append((f"buffer_load_dwordx4 v{V_WOFF+i}, s[{SRD_W}:{SRD_W+3}], s{S_SO} offen offset:{1024*i} lds", f"s{sig}"))
            out.append(f"s_add_u32 m0, s{S_LW}, {buf * 20480 + 4096}")
            out.append((f"buffer_load_dwordx4 v{V_WOFF+4}, s[{SRD_W}:{SRD_W+3}], s{S_SO} offen lds", f"s{sig}"))
            out.append(f"s_add_u32 s{S_KW}, s{S_KW}, 491520")
            out.append(f"s_cmp_ge_u32 s{S_KW}, 2457600")
            out.append(f"s_cselect_b32 s{S_T0}, 2457600, 0")
            out.append(f"s_sub_u32 s{S_KW}, s{S_KW}, s{S_T0}")
        if sig == 9:
            out.append(f"s_lshr_b32 s{S_T0}, s{S_WV}, 1")
            out.append(f"s_mul_i32 s{S_T0}, s{S_T0}, 245760")
            out.append(f"s_add_u32 s{S_KW}, s{S_KW}, s{S_T0}")
            out.append(f"s_cmp_ge_u32 s{S_KW}, 2457600")
            out.append(f"s_cselect_b32 s{S_T0}, 2457600, 0")
            out.append(f"s_sub_u32 s{S_KW}, s{S_KW}, s{S_T0}")
        return out

    def emit_list(lst):
        for x in lst:
            if isinstance(x, tuple):
                A(x[0]); vm.issue(x[1])
            else:
                A(x)

    def reads(sig, hf):
        out = []
        buf = sig % 4
        vb = V_WRD if buf < 2 else V_WRD2
        bo = (buf % 2) * 20480
        if sig < 10:
            P = 2 * sig + hf
            for rt in range(2):
                out.append(f"ds_read_b128 {xfrag(P, rt)}, v{V_XRD0 + hf} offset:{buf * 16384 + rt * 2048}")
        for c in range(10):
            img = 2 * hf + c // 5
            t = c % 5
            for h in range(2):
                out.append(f"ds_read_b64_tr_b16 {vr(wf(hf, c) + 2 * h, 2)}, v{vb} offset:{bo + img * 5120 + h * 1280 + 32 * t}")
        return out

    def mfmas(sig, hf):
        out = []
        for c in range(10):
            t = c % 5
            W = vr(wf(hf, c), 4)
            for rt in range(2):
                if sig < 10:
                    P = 2 * sig + hf
                    X = xfrag(P, rt)
                    first = (P == 0)
                    if c < 5:
                        acc = vr(kacc(rt, t), 4)
                        C = acc if not first else (vr(V_INIT, 4) if isA else "0")
                        if isA: out.append(f"v_mfma_f32_16x16x32_bf16 {acc}, {X}, {W}, {C}")
                        else:   out.append(f"v_mfma_f32_16x16x32_bf16 {acc}, {W}, {X}, {C}")
                    else:
                        acc = vr(vacc(rt, t), 4)
                        C = acc if not first else "0"
                        out.append(f"v_mfma_f32_16x16x32_bf16 {acc}, {X}, {W}, {C}")
                else:
                    P = 4 * (sig - 10) + 2 * hf + c // 5
                    X = xfrag(P, rt)
                    acc = vr(qacc(rt, t), 4)
                    first = (P == 0)
                    C = acc if not first else (vr(V_INIT, 4) if isA else "0")
                    out.append(f"v_mfma_f32_16x16x32_bf16 {acc}, {W}, {X}, {C}")
        return out

    def phase(mf, fill):
        fi = 0
        for m in mf:
            A(m)
            for _ in range(3):
                if fi < len(fill):
                    emit_list([fill[fi]]); fi += 1
        emit_list(fill[fi:])

    def merge(a, b):
        out = []; ia = ib = 0
        while ia < len(a) or ib < len(b):
            if ia < len(a): out.append(a[ia]); ia += 1
            if ia < len(a) : out.append(a[ia]); ia += 1
            if ib < len(b): out.append(b[ib]); ib += 1
        return out

    return dict(dma_slot=dma_slot, emit_list=emit_list, reads=reads, mfmas=mfmas, phase=phase, merge=merge,
                kacc=kacc, vacc=vacc, qacc=qacc, xfrag=xfrag)

def gen_k1(A, dbg=0):
    A(f".globl {K1}\n.p2align 8\n.type {K1},@function\n{K1}:")
    A("s_cmp_ge_u32 s2, 256")
    A("s_cbranch_scc1 L1_end")
    A("s_load_dwordx16 s[16:31], s[0:1], 0")
    A("s_load_dwordx4 s[32:35], s[0:1], 64")
    A(f"s_and_b32 s{S_BR}, s2, 1")
    A(f"s_lshr_b32 s{S_T0}, s2, 1"); A(f"s_and_b32 s{S_T0}, s{S_T0}, 1")
    A(f"s_lshr_b32 s{S_T1}, s2, 2"); A(f"s_and_b32 s{S_T1}, s{S_T1}, 1")
    A(f"s_lshr_b32 s{S_T2}, s2, 3")
    A(f"s_and_b32 s{S_T3}, s{S_T2}, 7")
    A(f"s_lshl_b32 s{S_RB}, s{S_T0}, 3"); A(f"s_add_u32 s{S_RB}, s{S_RB}, s{S_T3}")
    A(f"s_lshr_b32 s{S_T2}, s{S_T2}, 3")
    A(f"s_lshl_b32 s{S_HG}, s{S_T1}, 2"); A(f"s_add_u32 s{S_HG}, s{S_HG}, s{S_T2}")
    A(f"s_mul_i32 s{S_T2}, s{S_T2}, 5"); A(f"s_lshr_b32 s{S_T2}, s{S_T2}, 1")
    A(f"s_add_u32 s{S_ROT}, s{S_T3}, s{S_T2}")
    A(f"s_cmp_ge_u32 s{S_ROT}, 10"); A(f"s_cselect_b32 s{S_T0}, 10, 0"); A(f"s_sub_u32 s{S_ROT}, s{S_ROT}, s{S_T0}")
    A(f"v_lshrrev_b32 v1, 6, v0")
    A(f"v_and_b32 v{V_LANE}, 63, v0")
    A(f"v_readfirstlane_b32 s{S_WV}, v1")
    for i in range(5):
        A(f"v_add_u32 v2, {64*i}, v{V_LANE}")
        A("v_mul_u32_u24 v3, 6554, v2"); A("v_lshrrev_b32 v3, 16, v3")
        A("v_mul_u32_u24 v4, 10, v3"); A("v_sub_u32 v4, v2, v4")
        A("v_and_b32 v5, 0x13, v3"); A("v_bfe_u32 v6, v3, 2, 1"); A("v_lshl_or_b32 v5, v6, 3, v5")
        A("v_bfe_u32 v6, v3, 3, 1"); A("v_lshl_or_b32 v5, v6, 2, v5")
        A("v_mul_u32_u24 v5, 3840, v5")
        A(f"v_lshl_add_u32 v{V_WOFF+i}, v4, 4, v5")
        if 0 < i < 4: A(f"v_subrev_u32 v{V_WOFF+i}, {1024*i}, v{V_WOFF+i}")
    A(f"s_lshl_b32 s{S_T0}, s{S_RB}, 7"); A(f"s_lshl_b32 s{S_T1}, s{S_WV}, 5"); A(f"s_add_u32 s{S_T0}, s{S_T0}, s{S_T1}")
    A(f"v_lshrrev_b32 v2, 3, v{V_LANE}")
    A(f"v_add_u32 v2, s{S_T0}, v2")
    A("v_mul_u32_u24 v2, 1280, v2")
    A(f"v_and_b32 v3, 7, v{V_LANE}"); A(f"v_lshrrev_b32 v4, 4, v{V_LANE}"); A("v_xor_b32 v3, v3, v4")
    A("v_xor_b32 v4, 4, v3")
    for i in range(4):
        A(f"v_lshl_add_u32 v{V_XOFF+i}, v{3 + (i & 1)}, 4, v2")
        if i: A(f"v_add_u32 v{V_XOFF+i}, {i * (10240 - 1024)}, v{V_XOFF+i}")
    A(f"v_lshrrev_b32 v2, 4, v{V_LANE}")
    A(f"v_bfe_u32 v3, v{V_LANE}, 2, 2")
    A(f"v_and_b32 v4, 3, v{V_LANE}")
    A("v_lshrrev_b32 v5, 1, v2"); A("v_lshl_add_u32 v5, v5, 4, v3")
    A("v_and_b32 v6, 1, v2"); A("v_lshl_add_u32 v5, v6, 2, v5")
    A("v_mul_u32_u24 v5, 160, v5")
    A(f"v_lshl_add_u32 v{V_WRD}, v4, 3, v5")
    A(f"v_add_u32 v{V_WRD2}, 40960, v{V_WRD}")
    A(f"v_and_b32 v3, 15, v{V_LANE}")
    A("v_bfe_u32 v4, v3, 1, 3"); A("v_xor_b32 v4, v4, v2")
    A("v_lshlrev_b32 v4, 4, v4"); A("v_lshl_add_u32 v4, v3, 7, v4")
    A(f"s_lshl_b32 s{S_T1}, s{S_WV}, 12"); A(f"s_add_u32 s{S_LX}, s{S_T1}, {L_X}")
    A(f"v_add_u32 v{V_XRD0}, s{S_LX}, v4")
    A(f"v_xor_b32 v{V_XRD1}, 64, v{V_XRD0}")
    A(f"s_mul_i32 s{S_LW}, s{S_WV}, 5120")
    A(f"s_mul_i32 s{S_KW}, s{S_ROT}, 245760")
    A(f"s_lshl_b32 s{S_KX}, s{S_ROT}, 7")
    A(f"s_mul_i32 s{S_T0}, s{S_HG}, 160")
    A(f"s_lshr_b32 s{S_T1}, s{S_WV}, 1"); A(f"s_mul_i32 s{S_T1}, s{S_T1}, 122880")
    A(f"s_and_b32 s{S_T2}, s{S_WV}, 1"); A(f"s_mul_i32 s{S_T3}, s{S_T2}, 1280")
    A(f"s_add_u32 s{S_B1}, s{S_T0}, s{S_T1}"); A(f"s_add_u32 s{S_B1}, s{S_B1}, s{S_T3}"); A(f"s_add_u32 s{S_B1}, s{S_B1}, 1280")
    A(f"s_mul_i32 s{S_T3}, s{S_T2}, 122880"); A(f"s_add_u32 s{S_B2}, s{S_T0}, s{S_T3}")
    A(f"v_mov_b32 v{V_INIT}, 0x{f2u(1.0 + EPS):x}")
    for i in range(1, 4): A(f"v_mov_b32 v{V_INIT+i}, v{V_INIT}")
    A("s_waitcnt lgkmcnt(0)")
    A(f"s_cmp_eq_u32 s{S_BR}, 0")
    A(f"s_cselect_b32 s{SRD_W}, s18, s24"); A(f"s_cselect_b32 s{SRD_W+1}, s19, s25")
    A(f"s_mov_b32 s{SRD_W+2}, 2457600"); A(f"s_mov_b32 s{SRD_W+3}, 0x20000")
    A(f"s_mov_b32 s{SRD_X}, s16"); A(f"s_mov_b32 s{SRD_X+1}, s17")
    A(f"s_mov_b32 s{SRD_X+2}, 2621440"); A(f"s_mov_b32 s{SRD_X+3}, 0x20000")
    srd(A, SRD_WS, 34, 35, WS_SIZE)
    srd(A, SRD_DBG, 32, 33, 256)
    A("s_cbranch_scc0 L1_B")
    k1_branch(A, 'A', dbg)
    A("s_endpgm")
    A("L1_B:")
    A.hist = []
    k1_branch(A, 'B', dbg)
    A("L1_end:")
    A("s_endpgm")

def phi_pack_pairs(A, pairs, tmp):
    n = len(pairs)
    G = 4
    for g0 in range(0, n, G):
        grp = pairs[g0:g0 + G]
        for k, (s, d) in enumerate(grp):
            t = tmp + 2 * k
            A(f"v_pk_fma_f32 {vr(t,2)}, {vr(s,2)}, s[{S_C1}:{S_C1+1}], {vr(V_M,2)}")
        for k, (s, d) in enumerate(grp):
            t = tmp + 2 * k
            A(f"v_exp_f32_e64 v{t}, v{t} clamp")
            A(f"v_exp_f32_e64 v{t+1}, v{t+1} clamp")
        for k, (s, d) in enumerate(grp):
            t = tmp + 2 * k
            A(f"v_pk_add_f32 {vr(t,2)}, {vr(t,2)}, {vr(V_M+2,2)}")
        for k, (s, d) in enumerate(grp):
            t = tmp + 2 * k
            A(f"v_max_f32 v{t}, v{s}, v{t}")
            A(f"v_max_f32 v{t+1}, v{s+1}, v{t+1}")
        for k, (s, d) in enumerate(grp):
            t = tmp + 2 * k
            A(f"v_cvt_pk_bf16_f32 v{d}, v{t}, v{t+1}")

def f_store_offsets(A, rt, t, sdst, fbase):
    A(f"s_add_u32 s{S_T0}, s{S_U1}, {t}")
    A(f"s_lshr_b32 s{S_T1}, s{S_T0}, 1"); A(f"s_lshl_b32 s{S_T1}, s{S_T1}, 10")
    A(f"s_and_b32 s{S_T0}, s{S_T0}, 1"); A(f"s_lshl_b32 s{S_T0}, s{S_T0}, 3")
    A(f"s_add_u32 s{S_T0}, s{S_T0}, s{S_T1}")
    A(f"s_add_u32 s{sdst}, s{S_T0}, s{S_U0}")
    if rt: A(f"s_add_u32 s{sdst}, s{sdst}, 20480")

def k1_branch(A, br, dbg):
    isA = br == 'A'
    vm = VM()
    M = k1_main(A, vm, br)
    emit_list, dma_slot, reads, mfmas, phase, merge = (M[k] for k in ('emit_list', 'dma_slot', 'reads', 'mfmas', 'phase', 'merge'))
    kacc, vacc, qacc, xfrag = M['kacc'], M['vacc'], M['qacc'], M['xfrag']
    L = f"L1{br}_"
    WSD = f"s[{SRD_WS}:{SRD_WS+3}]"
    DBGD = f"s[{SRD_DBG}:{SRD_DBG+3}]"
    if isA:
        A(f"s_cmp_lg_u32 s{S_WV}, 0"); A(f"s_cbranch_scc1 {L}nz")
        A(f"s_lshl_b32 s{S_T0}, s{S_HG}, 13"); A(f"s_lshl_b32 s{S_T1}, s{S_RB}, 9"); A(f"s_add_u32 s{S_T0}, s{S_T0}, s{S_T1}")
        A(f"s_add_u32 s{S_T0}, s{S_T0}, {WS_KV}")
        A("v_mov_b32 v2, 0"); A("v_mov_b32 v3, 0"); A("v_mov_b32 v4, 0"); A("v_mov_b32 v5, 0")
        A(f"v_lshlrev_b32 v6, 4, v{V_LANE}")
        A("s_mov_b32 exec_hi, 0")
        A(f"buffer_store_dwordx4 v[2:5], v6, {WSD}, s{S_T0} offen sc1")
        A("s_mov_b32 exec_hi, -1")
        A(f"{L}nz:")
    for sig in range(4):
        emit_list(dma_slot(sig))
    if isA:
        srd(A, SRD_GW, 28, 29, 1280)
        A(f"s_mul_i32 s{S_T0}, s{S_WV}, 320")
        A(f"v_lshlrev_b32 v6, 4, v{V_LANE}")
        A(f"v_add_u32 v6, s{S_T0}, v6")
        A(f"s_add_u32 m0, s{S_T0}, {L_GW}")
        A("s_mov_b32 exec_lo, 0xfffff"); A("s_mov_b32 exec_hi, 0")
        A(f"buffer_load_dwordx4 v6, s[{SRD_GW}:{SRD_GW+3}], 0 offen lds"); vm.issue('gw')
        A(f"s_add_u32 m0, s{S_T0}, {L_GW + 1280}")
        A("s_nop 0")
        A(f"buffer_load_dwordx4 v6, s[{SRD_GW}:{SRD_GW+3}], 0 offen lds"); vm.issue('gw')
        A("s_mov_b64 exec, -1")
        A(f"s_mov_b32 s{S_C1}, 0x{f2u(LOG2E):x}"); A(f"s_mov_b32 s{S_C1+1}, 0x{f2u(LOG2E):x}")
        A(f"v_mov_b32 v{V_M}, 0x{f2u(-(1.0+EPS)*LOG2E):x}"); A(f"v_mov_b32 v{V_M+1}, v{V_M}")
        A(f"v_mov_b32 v{V_M+2}, 0x{f2u(EPS):x}"); A(f"v_mov_b32 v{V_M+3}, v{V_M+2}")
    A(f"s_waitcnt vmcnt({vm.n_after('s0')})")
    A("s_barrier")
    if isA:
        A(f"s_cmp_lg_u32 s{S_WV}, 0"); A(f"s_cbranch_scc1 {L}nz2")
        A(f"s_lshl_b32 s{S_T0}, s{S_HG}, 2")
        A("v_mov_b32 v2, 1"); A("v_mov_b32 v3, 0")
        A("s_mov_b64 exec, 1")
        A(f"buffer_atomic_add v2, v3, {DBGD}, s{S_T0} offen")
        A("s_mov_b64 exec, -1")
        A(f"{L}nz2:")
    emit_list(reads(0, 0))
    A("s_waitcnt lgkmcnt(0)")

    def iteration(sig, extra_after_barrier=()):
        last = (sig == 14)
        phase(mfmas(sig, 0), reads(sig, 1))
        if not last:
            A(f"s_waitcnt vmcnt({vm.n_after(f's{sig+1}')}) lgkmcnt(0)")
            A("s_barrier")
            d = dma_slot(sig + 4) if sig + 4 <= 14 else []
            d = list(extra_after_barrier) + d
            phase(mfmas(sig, 1), merge(d, reads(sig + 1, 0)))
            A("s_waitcnt lgkmcnt(0)")
        else:
            A("s_waitcnt lgkmcnt(0)")
            phase(mfmas(sig, 1), [])

    for sig in range(10):
        iteration(sig)
    if isA: k1_A_mid(A, vm, M, dbg)
    else:   k1_B_mid(A, vm, M, dbg)
    for sig in range(10, 15):
        extra = []
        if isA and sig == 10:
            extra = k1_A_unit_dma(A)
        if (not isA) and sig == 11:
            extra = k1_B_flag(A)
        iteration(sig, extra)
    if isA: k1_A_end(A, vm, M, dbg)
    else:   k1_B_end(A, vm, M, dbg)

def k1_A_mid(A, vm, M, dbg):
    kacc, vacc = M['kacc'], M['vacc']
    WSD = f"s[{SRD_WS}:{SRD_WS+3}]"
    DBGD = f"s[{SRD_DBG}:{SRD_DBG+3}]"
    L = "L1A_"
    TMP = V_QACC
    A(f"s_lshl_b32 s{S_T0}, s{S_HG}, 2")
    A(f"v_mov_b32 v{V_M+4}, 0")
    A(f"buffer_load_dword v{V_M+5}, v{V_M+4}, {DBGD}, s{S_T0} offen sc1"); vm.issue('zc')
    for t in range(5):
        b = V_VACC + 8 * t
        for k in range(4):
            A(f"v_cvt_pk_bf16_f32 v{b+k}, v{b+2*k}, v{b+2*k+1}")
    pairs = []
    for t in range(5):
        b = V_KACC + 8 * t
        for k in range(4):
            pairs.append((b + 2 * k, b + k))
    phi_pack_pairs(A, pairs, TMP)
    i_, g_ = 2, 3
    A(f"v_and_b32 v{i_}, 15, v{V_LANE}"); A(f"v_lshrrev_b32 v{g_}, 4, v{V_LANE}")
    A(f"s_lshl_b32 s{S_T0}, s{S_WV}, 6")
    A(f"v_lshl_add_u32 v4, v{g_}, 4, s{S_T0}")
    A(f"v_mul_u32_u24 v5, 272, v{i_}")
    A("v_add_u32 v5, v5, v4")
    A(f"v_add_u32 v6, {L_KREG}, v5")
    for t in range(5):
        A(f"ds_write_b128 v6, {vr(V_KACC + 8*t, 4)} offset:{t * 16 * 272}")
    for t in range(5):
        lo = (16 * t) // 20; hi = (16 * t + 15) // 20
        if lo == hi:
            A(f"ds_write_b128 v5, {vr(V_VACC + 8*t, 4)} offset:{L_VREG - 65536 + (16*t + lo) * 272}" if False else
              f"v_add_u32 v7, {L_VREG + (16*t + lo) * 272}, v5")
            A(f"ds_write_b128 v7, {vr(V_VACC + 8*t, 4)}")
        else:
            thr = hi * 20 - 16 * t
            A(f"v_cmp_le_u32 vcc, {thr}, v{i_}")
            A(f"v_mov_b32 v7, {L_VREG + (16*t + lo) * 272}")
            A(f"v_mov_b32 v8, {L_VREG + (16*t + hi) * 272}")
            A("v_cndmask_b32 v7, v7, v8, vcc")
            A("v_add_u32 v7, v7, v5")
            A(f"ds_write_b128 v7, {vr(V_VACC + 8*t, 4)}")
    A(f"v_mul_u32_u24 v7, {21*272}, v{i_}")
    A("v_add_u32 v7, v7, v4")
    A(f"v_add_u32 v7, {L_VREG + 20*272}, v7")
    for k in range(4): A(f"v_mov_b32 v{TMP+k}, 0x3f803f80")
    m = lanemask(lambda l: (l & 15) < 4)
    A(f"s_mov_b32 exec_lo, 0x{m & 0xffffffff:x}"); A(f"s_mov_b32 exec_hi, 0x{m >> 32:x}")
    A(f"ds_write_b128 v7, {vr(TMP,4)}")
    A("s_mov_b64 exec, -1")
    A(f"s_mul_i32 s{S_T0}, s{S_WV}, {20*272}"); A(f"s_add_u32 s{S_T0}, s{S_T0}, {L_KREG}")
    A(f"s_mul_i32 s{S_T1}, s{S_WV}, {21*272}"); A(f"s_add_u32 s{S_T1}, s{S_T1}, {L_VREG}")
    A(f"v_mul_u32_u24 v5, 272, v{i_}")
    A(f"v_lshl_add_u32 v5, v{g_}, 4, v5")
    A(f"v_add_u32 v6, s{S_T0}, v5")
    A(f"v_add_u32 v7, s{S_T1}, v5")
    A("s_waitcnt lgkmcnt(0)")
    A("s_barrier")
    OP = V_KACC
    for ws in range(4):
        o = OP + 16 * ws
        A(f"ds_read_b128 {vr(o,4)}, v6 offset:{64*ws}")
        A(f"ds_read_b128 {vr(o+4,4)}, v6 offset:{64*ws + 16*272}")
        A(f"ds_read_b128 {vr(o+8,4)}, v7 offset:{64*ws}")
        A(f"ds_read_b128 {vr(o+12,4)}, v7 offset:{64*ws + 16*272}")
    T = V_QACC
    for ws in range(4):
        o = OP + 16 * ws
        A(f"s_waitcnt lgkmcnt({12 - 4*ws})")
        C = lambda k: ("0" if ws == 0 else vr(T + 4*k, 4))
        A(f"v_mfma_f32_16x16x32_bf16 {vr(T,4)}, {vr(o+8,4)}, {vr(o,4)}, {C(0)}")
        A(f"v_mfma_f32_16x16x32_bf16 {vr(T+4,4)}, {vr(o+12,4)}, {vr(o,4)}, {C(1)}")
        A(f"v_mfma_f32_16x16x32_bf16 {vr(T+8,4)}, {vr(o+8,4)}, {vr(o+4,4)}, {C(2)}")
        A(f"v_mfma_f32_16x16x32_bf16 {vr(T+12,4)}, {vr(o+12,4)}, {vr(o+4,4)}, {C(3)}")
    A(f"s_sub_u32 s{S_T0}, 4, s{S_WV}")
    A(f"s_add_u32 s{S_T1}, s{S_WV}, 1")
    A(f"s_lshl_b32 s{S_T2}, s{S_T0}, 4")
    A(f"s_lshl_b32 s{S_T3}, s{S_T1}, 4")
    A(f"s_mul_i32 s94, s{S_T0}, 320")
    A(f"v_lshrrev_b32 v4, 2, v{i_}")
    A(f"v_cmp_gt_u32 vcc, s{S_T0}, v4")
    A(f"v_mov_b32 v5, s{S_T3}"); A(f"v_mov_b32 v6, s{S_T2}")
    A("v_cndmask_b32 v5, v5, v6, vcc")
    A(f"v_mov_b32 v6, s94"); A("v_cndmask_b32 v6, v6, 0, vcc")
    A(f"v_lshl_add_u32 v6, v{i_}, 2, v6")
    AD = V_M + 6
    A(f"v_mad_u32_u24 v{AD}, v{g_}, v5, v6")
    A(f"v_lshlrev_b32 v7, 2, v5")
    for j in range(1, 4): A(f"v_add_u32 v{AD+j}, v{AD+j-1}, v7")
    A(f"v_lshl_add_u32 v8, v{g_}, 2, 16")
    A(f"v_mad_u32_u24 v{AD+4}, v8, v5, v6")
    for j in range(1, 4): A(f"v_add_u32 v{AD+4+j}, v{AD+4+j-1}, v5")
    A(f"s_mul_i32 s95, s{S_T0}, 336"); A(f"s_lshl_b32 s94, s{S_WV}, 4"); A(f"s_add_u32 s95, s95, s94")
    A(f"v_lshl_add_u32 v6, v{i_}, 2, s95")
    A(f"v_mad_u32_u24 v{AD+8}, v{g_}, s{S_T3}, v6")
    A(f"v_mad_u32_u24 v{AD+9}, v8, s{S_T3}, v6")
    A(f"s_lshl_b32 s{S_T0}, s{S_HG}, 2"); A(f"s_add_u32 s{S_T0}, s{S_T0}, s{S_WV}"); A(f"s_lshl_b32 s{S_T0}, s{S_T0}, 11")
    A(f"s_add_u32 s{S_SO}, s{S_T0}, {WS_KV}")
    A(f"s_lshl_b32 s94, s{S_T3}, 2")
    A(f"s_add_u32 s90, s{S_SO}, s94"); A(f"s_add_u32 s91, s90, s94"); A(f"s_add_u32 s92, s91, s94")
    A(f"s_add_u32 s96, s{S_SO}, s{S_T3}"); A(f"s_add_u32 s97, s96, s{S_T3}"); A(f"s_add_u32 s98, s97, s{S_T3}")
    A(f"s_waitcnt vmcnt({vm.n_after('zc')})")
    A(f"s_mov_b32 s{S_T2}, 0")
    A(f"{L}zpoll:")
    A(f"v_readfirstlane_b32 s{S_T1}, v{V_M+5}")
    A(f"s_cmp_ge_u32 s{S_T1}, 16")
    A(f"s_cbranch_scc1 {L}zok")
    A(f"s_add_u32 s{S_T2}, s{S_T2}, 1")
    A(f"s_cmp_ge_u32 s{S_T2}, 0x100000")
    A(f"s_cbranch_scc1 {L}zok")
    A(f"s_lshl_b32 s{S_T0}, s{S_HG}, 2")
    A("s_sleep 2")
    A(f"buffer_load_dword v{V_M+5}, v{V_M+4}, {DBGD}, s{S_T0} offen sc1")
    A("s_waitcnt vmcnt(0)")
    A(f"s_branch {L}zpoll")
    A(f"{L}zok:")
    A.flush_hazards()
    for j in range(4):
        A(f"buffer_atomic_add_f32 v{T+j}, v{AD+j}, {WSD}, s{S_SO} offen")
    def setexec(fn):
        m = lanemask(fn)
        A(f"s_mov_b32 exec_lo, 0x{m & 0xffffffff:x}"); A(f"s_mov_b32 exec_hi, 0x{m >> 32:x}")
    setexec(lambda l: l < 32)
    A(f"buffer_atomic_add_f32 v{T+4}, v{AD+4}, {WSD}, s{S_SO} offen")
    setexec(lambda l: l < 16)
    for j in range(1, 4):
        A(f"buffer_atomic_add_f32 v{T+4+j}, v{AD+4+j}, {WSD}, s{S_SO} offen")
    setexec(lambda l: (l & 15) < 4)
    for j in range(4):
        so = S_SO if j == 0 else 89 + j
        A(f"buffer_atomic_add_f32 v{T+8+j}, v{AD+8}, {WSD}, s{so} offen")
    setexec(lambda l: (l & 15) < 4 and l < 32)
    A(f"buffer_atomic_add_f32 v{T+12}, v{AD+9}, {WSD}, s{S_SO} offen")
    setexec(lambda l: l < 4)
    for j in range(1, 4):
        A(f"buffer_atomic_add_f32 v{T+12+j}, v{AD+9}, {WSD}, s{95 + j} offen")
    A("s_mov_b64 exec, -1")
    A("s_nop 7")

def k1_A_unit_dma(A):
    out = []
    o = out.append
    VU = V_M + 6
    for (s, lo) in ((SRD_WOA, 20), (SRD_WOB, 26)):
        o(f"s_mov_b32 s{s}, s{lo}"); o(f"s_mov_b32 s{s+1}, s{lo+1}"); o(f"s_mov_b32 s{s+2}, 819200"); o(f"s_mov_b32 s{s+3}, 0x20000")
    o(f"v_lshrrev_b32 v2, 4, v{V_LANE}")
    o(f"v_and_b32 v3, 15, v{V_LANE}")
    o(f"v_lshlrev_b32 v4, 1, v2")
    o(f"v_xor_b32 v3, v3, v4")
    o(f"s_and_b32 s{S_T0}, s{S_WV}, 1")
    o(f"s_lshl_b32 s{S_T0}, s{S_T0}, 3")
    o(f"v_xor_b32 v3, s{S_T0}, v3")
    o(f"v_mul_u32_u24 v2, 1280, v2")
    o(f"v_lshl_add_u32 v{VU}, v3, 4, v2")
    o(f"v_mul_u32_u24 v2, 19, v2")
    o(f"v_add_u32 v{VU+1}, v{VU}, v2")
    o(f"s_lshl_b32 s90, s{S_RB}, 3")
    o(f"s_add_u32 s90, s90, s{S_HG}")
    return out

def unit_params(A, su, sw):
    A(f"s_cmp_ge_u32 s{su}, 100"); A(f"s_cselect_b32 s91, 1, 0")
    A(f"s_mul_i32 s{S_T0}, s91, 100"); A(f"s_sub_u32 s{S_T0}, s{su}, s{S_T0}")
    A(f"s_mul_i32 s92, s{S_T0}, 205"); A(f"s_lshr_b32 s92, s92, 10")
    A(f"s_mul_i32 s{S_T1}, s92, 5"); A(f"s_sub_u32 s93, s{S_T0}, s{S_T1}")

def k1_A_units_issue(A, vm):
    L = "L1A_"
    VU = V_M + 6
    for u in range(2):
        if u == 0: A(f"s_mov_b32 s94, s90")
        else:      A(f"s_add_u32 s94, s90, 128")
        A(f"s_cmp_ge_u32 s94, 200"); A(f"s_cbranch_scc1 {L}ud{u}")
        unit_params(A, 94, None)
        for h in range(2):
            A(f"s_lshl_b32 s{S_T0}, s92, 1")
            if h: A(f"s_add_u32 s{S_T0}, s{S_T0}, 1")
            A(f"s_mul_i32 s{S_T1}, s{S_T0}, 52"); A(f"s_lshr_b32 s{S_T1}, s{S_T1}, 8")
            A(f"s_mul_i32 s{S_T2}, s{S_T1}, 5"); A(f"s_sub_u32 s{S_T2}, s{S_T0}, s{S_T2}")
            A(f"s_mul_i32 s{S_T1}, s{S_T1}, 80")
            A(f"s_mul_i32 s{S_T3}, s{S_T2}, 20"); A(f"s_lshl_b32 s95, s{S_WV}, 2"); A(f"s_add_u32 s{S_T3}, s{S_T3}, s95")
            A(f"s_add_u32 s95, s{S_WV}, 16")
            A(f"s_cmp_eq_u32 s{S_T2}, 4"); A(f"s_cselect_b32 s{S_T3}, s95, s{S_T3}")
            A(f"s_cselect_b64 s[96:97], -1, 0")
            A(f"v_cndmask_b32 v{VU+2}, v{VU}, v{VU+1}, s[96:97]")
            A(f"s_add_u32 s{S_T1}, s{S_T1}, s{S_T3}")
            A(f"s_lshl_b32 s{S_T2}, s{S_T0}, 4"); A(f"s_lshl_b32 s95, s{S_WV}, 2"); A(f"s_add_u32 s{S_T2}, s{S_T2}, s95")
            A(f"s_cmp_eq_u32 s91, 0"); A(f"s_cselect_b32 s{S_T1}, s{S_T1}, s{S_T2}")
            A(f"s_mul_i32 s{S_T1}, s{S_T1}, 1280"); A(f"s_lshl_b32 s{S_T2}, s93, 8"); A(f"s_add_u32 s{S_T1}, s{S_T1}, s{S_T2}")
            A(f"s_lshl_b32 s{S_T2}, s{S_WV}, 11")
            A(f"s_add_u32 m0, s{S_T2}, {(L_UNIT0 if u == 0 else L_UNIT1) + 1024*h}")
            A(f"s_cmp_eq_u32 s91, 0")
            A(f"s_cbranch_scc0 {L}ub{u}{h}")
            A(f"buffer_load_dwordx4 v{VU+2}, s[{SRD_WOA}:{SRD_WOA+3}], s{S_T1} offen lds")
            A(f"s_branch {L}uc{u}{h}")
            A(f"{L}ub{u}{h}:")
            A(f"buffer_load_dwordx4 v{VU}, s[{SRD_WOB}:{SRD_WOB+3}], s{S_T1} offen lds")
            A(f"{L}uc{u}{h}:")
        A(f"{L}ud{u}:")

def k1_A_end(A, vm, M, dbg):
    qacc, xfrag = M['qacc'], M['xfrag']
    WSD = f"s[{SRD_WS}:{SRD_WS+3}]"
    L = "L1A_"
    TMP = V_WF
    k1_A_units_issue(A, vm)
    pairs = []
    for rt in range(2):
        for t in range(5):
            b = qacc(rt, t)
            for k in range(2):
                pairs.append((b + 2 * k, V_QACC + 20 * rt + 2 * t + k))
    phi_pack_pairs(A, pairs, TMP)
    A(f"s_lshl_b32 s{S_T0}, s{S_RB}, 3"); A(f"s_lshl_b32 s{S_T1}, s{S_WV}, 1"); A(f"s_add_u32 s{S_T0}, s{S_T0}, s{S_T1}")
    A(f"s_mul_i32 s{S_U0}, s{S_T0}, 20480"); A(f"s_add_u32 s{S_U0}, s{S_U0}, {WS_F0}")
    A(f"s_mul_i32 s{S_U1}, s{S_HG}, 5")
    A(f"v_lshlrev_b32 v2, 4, v{V_LANE}")
    for rt in range(2):
        for t in range(5):
            f_store_offsets(A, rt, t, S_SO, WS_F0)
            A(f"buffer_store_dwordx2 {vr(V_QACC + 20*rt + 2*t, 2)}, v2, {WSD}, s{S_SO} offen")
    A(f"s_lshr_b32 s{S_T0}, s{S_HG}, 1")
    A(f"s_cmp_lg_u32 s{S_T0}, s{S_WV}"); A(f"s_cbranch_scc1 {L}nogate")
    A(f"v_lshrrev_b32 v3, 4, v{V_LANE}"); A(f"v_lshlrev_b32 v3, 4, v3")
    A(f"s_lshl_b32 s{S_T0}, s{S_ROT}, 7"); A(f"s_add_u32 s{S_T0}, s{S_T0}, {L_GW}")
    A(f"v_add_u32 v3, s{S_T0}, v3")
    G = V_KACC
    for P in range(20):
        A(f"ds_read_b128 {vr(G + 4*P, 4)}, v3 offset:{(P >> 1) * 128 + (P & 1) * 64}")
    A(f"s_and_b32 s{S_T0}, s{S_HG}, 1"); A(f"s_cmp_eq_u32 s{S_T0}, 0")
    A("s_waitcnt lgkmcnt(0)")
    A(f"s_cbranch_scc0 {L}g1")
    R = V_WF
    for rt in range(2):
        if rt: A(f"{L}g1:")
        for P in range(20):
            acc = vr(R + 4 * (P & 1), 4)
            A(f"v_mfma_f32_16x16x32_bf16 {acc}, {vr(G + 4*P, 4)}, {xfrag(P, rt)}, {'0' if P < 2 else acc}")
        if rt == 0: A(f"s_branch {L}g2")
    A(f"{L}g2:")
    A.flush_hazards()
    A(f"v_add_f32 v{R}, v{R}, v{R+4}")
    A(f"v_mul_f32 v{R}, 0x{f2u(-LOG2E):x}, v{R}")
    A(f"v_exp_f32 v{R}, v{R}")
    A(f"v_add_f32 v{R}, 1.0, v{R}")
    A(f"v_rcp_f32 v{R}, v{R}")
    A(f"s_lshl_b32 s{S_T0}, s{S_RB}, 7"); A(f"s_lshl_b32 s{S_T1}, s{S_WV}, 5"); A(f"s_add_u32 s{S_T0}, s{S_T0}, s{S_T1}")
    A(f"s_and_b32 s{S_T1}, s{S_HG}, 1"); A(f"s_lshl_b32 s{S_T1}, s{S_T1}, 4"); A(f"s_add_u32 s{S_T0}, s{S_T0}, s{S_T1}")
    A(f"s_lshl_b32 s{S_T0}, s{S_T0}, 2"); A(f"s_add_u32 s{S_T0}, s{S_T0}, {WS_GATE}")
    A(f"v_lshlrev_b32 v3, 2, v{V_LANE}")
    A("s_mov_b64 exec, 0xffff")
    A(f"buffer_store_dword v{R}, v3, {WSD}, s{S_T0} offen")
    A("s_mov_b64 exec, -1")
    A(f"{L}nogate:")
    A("s_waitcnt vmcnt(0)")
    A("s_barrier")
    A(f"v_lshrrev_b32 v2, 4, v{V_LANE}")
    A(f"v_bfe_u32 v3, v{V_LANE}, 2, 2")
    A(f"v_and_b32 v4, 3, v{V_LANE}")
    A("v_lshl_add_u32 v5, v2, 3, v3"); A("v_lshlrev_b32 v5, 8, v5")
    A("v_and_b32 v6, 1, v4"); A("v_lshl_add_u32 v5, v6, 3, v5")
    A("v_lshlrev_b32 v6, 1, v3"); A("v_and_b32 v7, 1, v2"); A("v_lshl_or_b32 v6, v7, 3, v6")
    A("v_lshrrev_b32 v7, 1, v4"); A("v_or_b32 v6, v6, v7")
    A(f"s_lshl_b32 s{S_T0}, s{S_WV}, 2")
    A(f"v_xor_b32 v7, s{S_T0}, v6"); A("v_lshl_add_u32 v8, v7, 4, v5")
    A("v_xor_b32 v7, 2, v7"); A("v_lshl_add_u32 v9, v7, 4, v5")
    A(f"v_lshlrev_b32 v2, 4, v{V_LANE}")
    for u in range(2):
        if u == 0: A(f"s_mov_b32 s94, s90")
        else:      A(f"s_add_u32 s94, s90, 128")
        A(f"s_cmp_ge_u32 s94, 200"); A(f"s_cbranch_scc1 {L}ur{u}")
        unit_params(A, 94, None)
        ub = L_UNIT0 if u == 0 else L_UNIT1
        R = V_WF + 8 * u
        A(f"v_add_u32 v10, {ub}, v8"); A(f"v_add_u32 v11, {ub}, v9")
        for e in range(2):
            for h in range(2):
                A(f"ds_read_b64_tr_b16 {vr(R + 4*e + 2*h, 2)}, v{10+e} offset:{1024*h}")
        for e in range(2):
            A(f"s_lshl_b32 s{S_T0}, s93, 3"); A(f"s_lshl_b32 s{S_T1}, s{S_WV}, 1"); A(f"s_add_u32 s{S_T0}, s{S_T0}, s{S_T1}")
            if e: A(f"s_add_u32 s{S_T0}, s{S_T0}, 1")
            A(f"s_mul_i32 s{S_T1}, s{S_T0}, 52"); A(f"s_lshr_b32 s{S_T1}, s{S_T1}, 8")
            A(f"s_mul_i32 s{S_T2}, s{S_T1}, 5"); A(f"s_sub_u32 s{S_T2}, s{S_T0}, s{S_T2}")
            A(f"s_lshl_b32 s{S_T3}, s91, 3"); A(f"s_add_u32 s{S_T1}, s{S_T1}, s{S_T3}")
            A(f"s_mul_i32 s{S_T1}, s{S_T1}, 20"); A(f"s_add_u32 s{S_T1}, s{S_T1}, s92")
            A(f"s_mul_i32 s{S_T1}, s{S_T1}, 5"); A(f"s_add_u32 s{S_T1}, s{S_T1}, s{S_T2}")
            A(f"s_lshl_b32 s{S_T1}, s{S_T1}, 10"); A(f"s_add_u32 s{S_T1}, s{S_T1}, {WS_WP}")
            if e == 0: A("s_waitcnt lgkmcnt(0)")
            A(f"buffer_store_dwordx4 {vr(R + 4*e, 4)}, v2, {WSD}, s{S_T1} offen")
        A(f"{L}ur{u}:")

def k1_B_mid(A, vm, M, dbg):
    WSD = f"s[{SRD_WS}:{SRD_WS+3}]"
    L = "L1B_"
    for t in range(5):
        b = V_VACC + 8 * t
        A(f"v_cvt_pk_bf16_f32 v{b+3}, v{b+2}, v{b+3}")
        A(f"v_cvt_pk_bf16_f32 v{b+2}, v{b}, v{b+1}")
        A(f"v_cvt_pk_bf16_f32 v{b+4}, v{b+4}, v{b+5}")
        A(f"v_cvt_pk_bf16_f32 v{b+5}, v{b+6}, v{b+7}")
    for rt in range(2):
        b = V_KACC + 20 * rt
        for k in range(10):
            A(f"v_cvt_pk_bf16_f32 v{b+k}, v{b+2*k}, v{b+2*k+1}")
    A(f"v_lshlrev_b32 v2, 3, v{V_LANE}")
    A(f"s_cmp_eq_u32 s{S_WV}, 3"); A(f"s_cbranch_scc1 {L}hg")
    A(f"s_mul_i32 s{S_T0}, s{S_WV}, 5120"); A(f"s_add_u32 s{S_T0}, s{S_T0}, {L_HALO}")
    A(f"v_add_u32 v3, s{S_T0}, v2")
    for q in range(5):
        A(f"ds_write_b64 v3, {vr(V_KACC + 20 + 2*q, 2)} offset:{512*q}")
    for q in range(5):
        A(f"ds_write_b64 v3, {vr(V_VACC + 8*q + 4, 2)} offset:{512*(5+q)}")
    A(f"s_branch {L}hd")
    A(f"{L}hg:")
    A(f"s_lshl_b32 s{S_T0}, s{S_RB}, 3"); A(f"s_add_u32 s{S_T0}, s{S_T0}, s{S_HG}"); A(f"s_mul_i32 s{S_T0}, s{S_T0}, 5120")
    A(f"s_add_u32 s{S_T0}, s{S_T0}, {WS_HALO}")
    for q in range(5):
        A(f"buffer_store_dwordx2 {vr(V_KACC + 20 + 2*q, 2)}, v2, {WSD}, s{S_T0} offen offset:{512*q} sc1")
    A(f"s_add_u32 s{S_T1}, s{S_T0}, 2560")
    for q in range(5):
        A(f"buffer_store_dwordx2 {vr(V_VACC + 8*q + 4, 2)}, v2, {WSD}, s{S_T1} offen offset:{512*q} sc1")
    A(f"{L}hd:")
    vm.issue_marker = len(vm.ops)

def k1_B_flag(A):
    return []

def k1_B_flag_emit(A, vm):
    DBGD = f"s[{SRD_DBG}:{SRD_DBG+3}]"
    L = "L1B_"
    n = len(vm.ops) - vm.issue_marker
    A(f"s_cmp_lg_u32 s{S_WV}, 3"); A(f"s_cbranch_scc1 {L}nf")
    A(f"s_waitcnt vmcnt({n})")
    A(f"s_lshl_b32 s{S_T0}, s{S_HG}, 2"); A(f"s_add_u32 s{S_T0}, s{S_T0}, 32")
    A(f"s_lshl_b32 s{S_T1}, 1, s{S_RB}")
    A(f"v_mov_b32 v2, s{S_T1}"); A("v_mov_b32 v3, 0")
    A("s_mov_b64 exec, 1")
    A(f"buffer_atomic_or v2, v3, {DBGD}, s{S_T0} offen")
    A("s_mov_b64 exec, -1")
    A(f"{L}nf:")

def k1_B_end(A, vm, M, dbg):
    qacc = M['qacc']
    WSD = f"s[{SRD_WS}:{SRD_WS+3}]"
    DBGD = f"s[{SRD_DBG}:{SRD_DBG+3}]"
    L = "L1B_"
    k1_B_flag_emit(A, vm)
    KPREV = V_KACC + 10
    BIAS = V_M + 8
    ONES = V_M + 12
    MK = V_M + 16
    set_mask(A, SM_PAR, lanemask(lambda l: l & 1))
    set_mask(A, SM_C0, lanemask(lambda l: 4 * (l >> 4) + (l & 1) <= (l & 15)))
    set_mask(A, SM_C1, lanemask(lambda l: 4 * (l >> 4) + (l & 1) + 2 <= (l & 15)))
    for h, s in ((1, SM_GE1), (2, SM_GE2), (3, SM_GE3)):
        set_mask(A, s, lanemask(lambda l: (l >> 4) >= h))
    GE = {1: SM_GE1, 2: SM_GE2, 3: SM_GE3}
    sm = lambda s: f"s[{s}:{s+1}]"
    A("v_mov_b32 v2, 0xffff"); A("v_mov_b32 v3, 0xffff0000")
    A(f"v_cndmask_b32 v2, v2, v3, {sm(SM_PAR)}")
    A(f"v_cndmask_b32 v{MK}, v2, 0, {sm(SM_C0)}")
    A(f"v_cndmask_b32 v{MK+1}, 0, v2, {sm(SM_C0)}")
    A(f"v_cndmask_b32 v{MK+2}, v2, 0, {sm(SM_C1)}")
    A(f"v_cndmask_b32 v{MK+3}, 0, v2, {sm(SM_C1)}")
    for k in range(4): A(f"v_mov_b32 v{ONES+k}, 0x3f803f80")
    for k in range(4): A(f"v_mov_b32 v{BIAS+k}, 0")
    for rt in range(2):
        b = V_QACC + 20 * rt
        for k in range(10):
            A(f"v_cvt_pk_bf16_f32 v{b+k}, v{b+2*k}, v{b+2*k+1}")
    A(f"v_lshlrev_b32 v2, 3, v{V_LANE}")
    A(f"s_cmp_eq_u32 s{S_WV}, 0"); A(f"s_cbranch_scc1 {L}pg")
    A(f"s_mul_i32 s{S_T0}, s{S_WV}, 5120"); A(f"s_add_u32 s{S_T0}, s{S_T0}, {L_HALO - 5120}")
    A(f"v_add_u32 v3, s{S_T0}, v2")
    for q in range(5):
        A(f"ds_read_b64 {vr(KPREV + 2*q, 2)}, v3 offset:{512*q}")
    for q in range(5):
        A(f"ds_read_b64 {vr(V_VACC + 8*q, 2)}, v3 offset:{512*(5+q)}")
    A("s_waitcnt lgkmcnt(0)")
    A(f"s_branch {L}pd")
    A(f"{L}pg:")
    A(f"s_cmp_eq_u32 s{S_RB}, 0"); A(f"s_cbranch_scc1 {L}pz")
    A(f"s_lshl_b32 s{S_T0}, s{S_HG}, 2"); A(f"s_add_u32 s{S_T0}, s{S_T0}, 32")
    A(f"s_sub_u32 s{S_T3}, s{S_RB}, 1")
    A("v_mov_b32 v3, 0")
    A(f"s_mov_b32 s{S_T2}, 0")
    A(f"{L}poll:")
    A(f"buffer_load_dword v4, v3, {DBGD}, s{S_T0} offen sc1")
    A("s_waitcnt vmcnt(0)")
    A(f"v_readfirstlane_b32 s{S_T1}, v4")
    A(f"s_lshr_b32 s{S_T1}, s{S_T1}, s{S_T3}"); A(f"s_and_b32 s{S_T1}, s{S_T1}, 1")
    A(f"s_cmp_eq_u32 s{S_T1}, 1"); A(f"s_cbranch_scc1 {L}pok")
    A(f"s_add_u32 s{S_T2}, s{S_T2}, 1"); A(f"s_cmp_ge_u32 s{S_T2}, 0x100000"); A(f"s_cbranch_scc1 {L}pok")
    A("s_sleep 2")
    A(f"s_branch {L}poll")
    A(f"{L}pok:")
    A(f"s_lshl_b32 s{S_T0}, s{S_T3}, 3"); A(f"s_add_u32 s{S_T0}, s{S_T0}, s{S_HG}"); A(f"s_mul_i32 s{S_T0}, s{S_T0}, 5120")
    A(f"s_add_u32 s{S_T0}, s{S_T0}, {WS_HALO}")
    for q in range(5):
        A(f"buffer_load_dwordx2 {vr(KPREV + 2*q, 2)}, v2, {WSD}, s{S_T0} offen offset:{512*q} sc1")
    A(f"s_add_u32 s{S_T1}, s{S_T0}, 2560")
    for q in range(5):
        A(f"buffer_load_dwordx2 {vr(V_VACC + 8*q, 2)}, v2, {WSD}, s{S_T1} offen offset:{512*q} sc1")
    A("s_waitcnt vmcnt(0)")
    A(f"s_branch {L}pd")
    A(f"{L}pz:")
    for q in range(10): A(f"v_mov_b32 v{KPREV+q}, 0")
    for q in range(5):
        A(f"v_mov_b32 v{V_VACC+8*q}, 0"); A(f"v_mov_b32 v{V_VACC+8*q+1}, 0")
    for k in range(4): A(f"v_mov_b32 v{BIAS+k}, 0x{f2u(-1e30):x}")
    A(f"{L}pd:")
    A.flush_hazards()
    SC = (20 ** -0.5) * LOG2E
    A(f"s_mov_b32 s{S_C1}, 0x{f2u(SC):x}")
    A(f"s_lshl_b32 s{S_T0}, s{S_RB}, 3"); A(f"s_lshl_b32 s{S_T1}, s{S_WV}, 1"); A(f"s_add_u32 s{S_T0}, s{S_T0}, s{S_T1}")
    A(f"s_mul_i32 s{S_U0}, s{S_T0}, 20480"); A(f"s_add_u32 s{S_U0}, s{S_U0}, {WS_F1}")
    A(f"s_mul_i32 s{S_U1}, s{S_HG}, 5")
    A(f"v_lshlrev_b32 v9, 4, v{V_LANE}")
    T = V_WF
    QM = T
    SP = T + 16
    SCU = T + 32
    X0 = T + 48
    X1 = T + 52
    MX = T + 56
    PP = T + 60
    for rt in range(2):
        Q = V_QACC + 20 * rt
        KC = V_KACC + 20 * rt
        KP = KPREV if rt == 0 else V_KACC
        for h in range(4):
            for k in range(2):
                src = Q + 2 * h + k
                if h == 0: A(f"v_mov_b32 v{QM+4*h+k}, v{src}")
                else:      A(f"v_cndmask_b32 v{QM+4*h+k}, 0, v{src}, {sm(GE[h])}")
            for k in range(2):
                src = Q + 2 * (h + 1) + k
                if h == 3: A(f"v_mov_b32 v{QM+4*h+2+k}, v{src}")
                else:      A(f"v_cndmask_b32 v{QM+4*h+2+k}, v{src}, 0, {sm(GE[h+1])}")
        for h in range(4):
            Cb = vr(BIAS, 4) if rt == 0 else "0"
            A(f"v_mfma_f32_16x16x32_bf16 {vr(SP+4*h,4)}, {vr(KP+2*h,4)}, {vr(QM+4*h,4)}, {Cb}")
            A(f"v_mfma_f32_16x16x32_bf16 {vr(SCU+4*h,4)}, {vr(KC+2*h,4)}, {vr(QM+4*h,4)}, 0")
        for h in range(4):
            p, c = SP + 4 * h, SCU + 4 * h
            A(f"v_cndmask_b32 v{p}, v{p}, v{p+1}, {sm(SM_PAR)}")
            A(f"v_cndmask_b32 v{c}, v{c}, v{c+1}, {sm(SM_PAR)}")
            A(f"v_cndmask_b32 v{p+2}, v{p+2}, v{p+3}, {sm(SM_PAR)}")
            A(f"v_cndmask_b32 v{c+2}, v{c+2}, v{c+3}, {sm(SM_PAR)}")
            A(f"v_cndmask_b32 v{X0+h}, v{p}, v{c}, {sm(SM_C0)}")
            A(f"v_cndmask_b32 v{X1+h}, v{p+2}, v{c+2}, {sm(SM_C1)}")
            A(f"v_max_f32 v{MX+h}, v{X0+h}, v{X1+h}")
        a0, a1, a2, a3 = MX, MX + 1, MX + 2, MX + 3
        A(f"v_permlane32_swap_b32 v{a0}, v{a1}")
        A(f"v_permlane32_swap_b32 v{a2}, v{a3}")
        A(f"v_max_f32 v{a0}, v{a0}, v{a1}")
        A(f"v_max_f32 v{a2}, v{a2}, v{a3}")
        A(f"v_permlane16_swap_b32 v{a0}, v{a2}")
        A(f"v_max_f32 v{a0}, v{a0}, v{a2}")
        A(f"v_mul_f32 v{a0}, s{S_C1}, v{a0}")
        A(f"v_mov_b32 v{a2}, v{a0}")
        A(f"v_permlane16_swap_b32 v{a0}, v{a2}")
        A(f"v_mov_b32 v{a1}, v{a0}")
        A(f"v_mov_b32 v{a3}, v{a2}")
        A(f"v_permlane32_swap_b32 v{a0}, v{a1}")
        A(f"v_permlane32_swap_b32 v{a2}, v{a3}")
        for h in range(4):
            A(f"v_fma_f32 v{X0+h}, v{X0+h}, s{S_C1}, -v{MX+h}")
            A(f"v_fma_f32 v{X1+h}, v{X1+h}, s{S_C1}, -v{MX+h}")
        for h in range(4):
            A(f"v_exp_f32 v{X0+h}, v{X0+h}")
            A(f"v_exp_f32 v{X1+h}, v{X1+h}")
        for h in range(4):
            A(f"v_cvt_pk_bf16_f32 v{X0+h}, v{X0+h}, v{X0+h}")
            A(f"v_cvt_pk_bf16_f32 v{X1+h}, v{X1+h}, v{X1+h}")
        for h in range(4):
            p = PP + 4 * h
            A(f"v_and_b32 v{p}, v{X0+h}, v{MK}")
            A(f"v_and_b32 v{p+1}, v{X1+h}, v{MK+2}")
            A(f"v_and_b32 v{p+2}, v{X0+h}, v{MK+1}")
            A(f"v_and_b32 v{p+3}, v{X1+h}, v{MK+3}")
        for h in range(4):
            vo = 0 if rt == 0 else 2
            A(f"v_mfma_f32_16x16x32_bf16 {vr(SCU+4*h,4)}, {vr(ONES,4)}, {vr(PP+4*h,4)}, 0")
            A(f"v_mfma_f32_16x16x32_bf16 {vr(QM+4*h,4)}, {vr(V_VACC+8*h+vo,4)}, {vr(PP+4*h,4)}, 0")
            A(f"v_mfma_f32_16x16x32_bf16 {vr(SP+4*h,4)}, {vr(V_VACC+8*(h+1)+vo,4)}, {vr(PP+4*h,4)}, 0")
        for h in range(4):
            A(f"v_rcp_f32 v{MX+h}, v{SCU+4*h}")
        for t in range(1, 4):
            A(f"v_cndmask_b32 v{X0+t}, v{MX+t-1}, v{MX+t}, {sm(GE[t])}")
        for t in range(5):
            if t == 0:   src = [QM + j for j in range(4)]; r = MX
            elif t == 4: src = [SP + 12 + j for j in range(4)]; r = MX + 3
            else:
                for j in range(4):
                    A(f"v_cndmask_b32 v{QM+4*t+j}, v{SP+4*(t-1)+j}, v{QM+4*t+j}, {sm(GE[t])}")
                src = [QM + 4 * t + j for j in range(4)]; r = X0 + t
            for j in range(4):
                A(f"v_mul_f32 v{src[j]}, v{src[j]}, v{r}")
            o = PP + 2 * t
            A(f"v_cvt_pk_bf16_f32 v{o}, v{src[0]}, v{src[1]}")
            A(f"v_cvt_pk_bf16_f32 v{o+1}, v{src[2]}, v{src[3]}")
            f_store_offsets(A, rt, t, S_SO, WS_F1)
            A(f"buffer_store_dwordx2 {vr(o,2)}, v9, {WSD}, s{S_SO} offen")

def kdesc(name, vgpr, accum, lds=0):
    return f""".amdhsa_kernel {name}
  .amdhsa_next_free_vgpr {vgpr}
  .amdhsa_next_free_sgpr 102
  .amdhsa_accum_offset {accum}
  .amdhsa_group_segment_fixed_size 0
  .amdhsa_kernarg_size 80
  .amdhsa_user_sgpr_count 2
  .amdhsa_user_sgpr_kernarg_segment_ptr 1
  .amdhsa_system_sgpr_workgroup_id_x 1
.end_amdhsa_kernel
"""

HEADER = open('cdna_kernels/' + NAME + '.s.ref').read().split('; Override launch')[0]

def main():
    out = sys.argv[1] if len(sys.argv) > 1 else 'cdna_kernels/' + NAME + '.s'
    only1 = '--k1' in sys.argv
    A = Asm()
    gen_k1(A)
    txt = HEADER
    txt += f"; @launch kernel={K1} grid=(256,1,1) block=(256,1,1) lds={K1_LDS}\n"
    if not only1:
        from gen2 import gen_k2, K2_LDS
        txt += f"; @launch kernel={K2} grid=(256,1,1) block=(256,1,1) lds={K2_LDS}\n"
    txt += '.amdgcn_target "amdgcn-amd-amdhsa--gfx950"\n.text\n'
    txt += A.text()
    if not only1:
        B = Asm()
        gen_k2(B)
        txt += B.text()
    txt += '.section .rodata,"a"\n.p2align 6\n'
    txt += kdesc(K1, 512, 256)
    if not only1:
        txt += kdesc(K2, 512, 256)
    open(out, 'w').write(txt)

if __name__ == '__main__':
    main()
```

```python
import sys, struct
from asmfw import *

NAME = "gated_mix__linear_attn_block__sliding_local_dilated__prompt"
K1 = NAME + "_kernel"

def f2u(x): return struct.unpack('<I', struct.pack('<f', x))[0]

WS_F    = 0
WS_KV   = 0x500000
WS_GATE = 0x510000
WS_FLG  = 0x520000
FL_ED, FL_KVD, FL_HF, FL_OD = 0, 0x8000, 0x18000, 0x20000
WS_HALO = 0x560000
WS_WP   = 0x600000
WS_TS   = 0x800000
WS_SIZE = 0x900000

L_W   = 0
L_X   = 81920
L_KREG = L_X
L_VREG = L_X + 80 * 272
L_HALO = L_X
L_UNIT = 147456
L_KVX  = 155648
K1_LDS = 163840

LOG2E = 1.4426950408889634
EPS = 1e-6
POLL_LIM = 0x20000

def lanemask(fn):
    m = 0
    for l in range(64):
        if fn(l): m |= 1 << l
    return m

TS = '--ts' in sys.argv
def _arg(name, d):
    for a in sys.argv:
        if a.startswith(f'--{name}='): return int(a.split('=')[1])
    return d
PRO_N = _arg('pron', 18); Q_EARLY = _arg('qe', 9); N_EARLY = _arg('ne', 1); Q0 = _arg('q0', 4); Q1 = _arg('q1', 5); PH_OFF = _arg('phoff', 1)
WFILL = _arg('wfill', 6)
class TSt:
    n = 0
    names = []
def ts(A, name, vreg=255):
    if not TS: return
    A("s_memtime s[100:101]")
    A("s_waitcnt lgkmcnt(0)")
    A(f"v_writelane_b32 v{vreg}, s100, {TSt.n}")
    TSt.names.append(name); TSt.n += 1
def ts_reset(tag):
    if TS and TSt.names: print("TSNAMES", tag, TSt.names)
    TSt.n = 0; TSt.names = []
def ts_store(A, srd_, vreg=255):
    if not TS: return
    A(f"s_lshl_b32 s100, s2, 2"); A(f"s_add_u32 s100, s100, s6"); A("s_lshl_b32 s100, s100, 8")
    A(f"s_add_u32 s100, s100, {WS_TS}")
    A("v_mbcnt_lo_u32_b32 v1, -1, 0"); A("v_mbcnt_hi_u32_b32 v1, -1, v1"); A("v_lshlrev_b32 v1, 2, v1")
    A(f"buffer_store_dword v{vreg}, v1, s[{srd_}:{srd_+3}], s100 offen")

class VM:
    def __init__(self): self.ops = []
    def issue(self, tag): self.ops.append(tag)
    def idx(self, tag): return max(i for i, t in enumerate(self.ops) if t == tag)
    def n_after(self, *tags):
        n = 63
        for tag in tags:
            assert tag in self.ops, tag
            n = min(n, len(self.ops) - 1 - self.idx(tag))
        return n
    def wait(self, A, *tags, lgkm=False):
        n = self.n_after(*tags)
        A(f"s_waitcnt vmcnt({n})" + (" lgkmcnt(0)" if lgkm else ""))

def set_mask(A, s, m):
    A(f"s_mov_b32 s{s}, 0x{m & 0xffffffff:x}")
    A(f"s_mov_b32 s{s+1}, 0x{(m >> 32) & 0xffffffff:x}")
def set_exec(A, fn):
    m = lanemask(fn)
    A(f"s_mov_b32 exec_lo, 0x{m & 0xffffffff:x}"); A(f"s_mov_b32 exec_hi, 0x{m >> 32:x}")

def srd(A, s, plo, phi, size):
    A(f"s_mov_b32 s{s}, s{plo}")
    A(f"s_mov_b32 s{s+1}, s{phi}")
    A(f"s_mov_b32 s{s+2}, {size}")
    A(f"s_mov_b32 s{s+3}, 0x20000")

S_BR, S_RB, S_HG, S_WV, S_ROT = 3, 4, 5, 6, 7
S_T0, S_T1, S_T2, S_T3 = 8, 9, 10, 11
S_GROW, S_PC = 12, 13
S_RHO, S_CG = 14, 15
SRD_W, SRD_X, SRD_WS, SRD_DBG, SRD_WO, SRD_OUT, SRD_GW = 36, 40, 44, 48, 52, 56, 60
S_KW, S_KX, S_B1, S_B2, S_LW, S_LX, S_SO = 64, 65, 66, 67, 68, 69, 70
SM_PAR, SM_C0, SM_C1, SM_GE1, SM_GE2, SM_GE3 = 72, 74, 76, 78, 80, 82
S_C1 = 84
S_U0 = 88; S_U1 = 89
S_WPB, S_WPA = 86, 87
S_NON = 16
V_WOFF = 10
V_XOFF = 15
V_WRD, V_WRD2, V_XRD0, V_XRD1 = 19, 20, 21, 22
V_LANE = 23
V_INIT = 24
V_G = 28
V_P2 = 30
V_POLL = 252
V_NON = 250
V_KACC, V_VACC, V_QACC = 32, 72, 112
V_WF = 152
V_M = 232
WSD = f"s[{SRD_WS}:{SRD_WS+3}]"
DBGD = f"s[{SRD_DBG}:{SRD_DBG+3}]"
sm = lambda s: f"s[{s}:{s+1}]"

class Lbl:
    n = 0
def newlbl(p):
    Lbl.n += 1
    return f"L{p}{Lbl.n}"

def poll(A, vm, tag, load, check, pre_wait=True):
    lo, ok = newlbl("pl"), newlbl("pk")
    if pre_wait: vm.wait(A, tag)
    A(f"s_mov_b32 s{S_PC}, 0")
    A(f"{lo}:")
    check()
    A(f"s_cbranch_scc1 {ok}")
    A(f"s_add_u32 s{S_PC}, s{S_PC}, 1")
    A(f"s_cmp_ge_u32 s{S_PC}, {POLL_LIM}")
    A(f"s_cbranch_scc1 {ok}")
    A("s_sleep 1")
    for l in (load if isinstance(load, list) else [load]): A(l)
    A("s_waitcnt vmcnt(0)")
    A(f"s_branch {lo}")
    A(f"{ok}:")
    A.flush_hazards()

def k1_main(A, vm, br):
    isA = br == 'A'
    def kacc(rt, t): return (V_KACC + 8 * t + 4 * rt) if isA else (V_KACC + 20 * rt + 4 * t)
    def vacc(rt, t): return V_VACC + 8 * t + 4 * rt
    def qacc(rt, t): return V_QACC + 20 * rt + 4 * t
    def xfrag(P, rt): return ar((2 * P + rt) * 4, 4)
    def wf(hf, c): return V_WF + 40 * hf + 4 * c

    def dma_slot(sig):
        out = []
        buf = sig % 4
        if sig < 10:
            out.append(f"s_add_u32 s{S_SO}, s{S_KW}, s{S_B1}")
            out.append(f"s_add_u32 m0, s{S_LW}, {buf * 20480}")
            for i in range(4):
                out.append((f"buffer_load_dwordx4 v{V_WOFF+i}, s[{SRD_W}:{SRD_W+3}], s{S_SO} offen offset:{1024*i} lds", f"s{sig}"))
            out.append(f"s_add_u32 m0, s{S_LW}, {buf * 20480 + 4096}")
            out.append((f"buffer_load_dwordx4 v{V_WOFF+4}, s[{SRD_W}:{SRD_W+3}], s{S_SO} offen lds", f"s{sig}"))
            out.append(f"s_add_u32 m0, s{S_LX}, {buf * 16384}")
            for i in range(4):
                out.append((f"buffer_load_dwordx4 v{V_XOFF+i}, s[{SRD_X}:{SRD_X+3}], s{S_KX} offen offset:{1024*i} lds", f"s{sig}"))
            out.append(f"s_add_u32 s{S_KW}, s{S_KW}, 245760")
            out.append(f"s_cmp_eq_u32 s{S_KW}, 2457600")
            out.append(f"s_cselect_b32 s{S_KW}, 0, s{S_KW}")
            out.append(f"s_add_u32 s{S_KX}, s{S_KX}, 128")
            out.append(f"s_cmp_eq_u32 s{S_KX}, 1280")
            out.append(f"s_cselect_b32 s{S_KX}, 0, s{S_KX}")
        else:
            out.append(f"s_add_u32 s{S_SO}, s{S_KW}, s{S_B2}")
            out.append(f"s_add_u32 m0, s{S_LW}, {buf * 20480}")
            for i in range(4):
                out.append((f"buffer_load_dwordx4 v{V_WOFF+i}, s[{SRD_W}:{SRD_W+3}], s{S_SO} offen offset:{1024*i} lds", f"s{sig}"))
            out.append(f"s_add_u32 m0, s{S_LW}, {buf * 20480 + 4096}")
            out.append((f"buffer_load_dwordx4 v{V_WOFF+4}, s[{SRD_W}:{SRD_W+3}], s{S_SO} offen lds", f"s{sig}"))
            out.append(f"s_add_u32 s{S_KW}, s{S_KW}, 491520")
            out.append(f"s_cmp_ge_u32 s{S_KW}, 2457600")
            out.append(f"s_cselect_b32 s{S_T0}, 2457600, 0")
            out.append(f"s_sub_u32 s{S_KW}, s{S_KW}, s{S_T0}")
        if sig == 9:
            out.append(f"s_lshr_b32 s{S_T0}, s{S_WV}, 1")
            out.append(f"s_mul_i32 s{S_T0}, s{S_T0}, 245760")
            out.append(f"s_add_u32 s{S_KW}, s{S_KW}, s{S_T0}")
            out.append(f"s_cmp_ge_u32 s{S_KW}, 2457600")
            out.append(f"s_cselect_b32 s{S_T0}, 2457600, 0")
            out.append(f"s_sub_u32 s{S_KW}, s{S_KW}, s{S_T0}")
        return out

    def emit_list(lst):
        for x in lst:
            if isinstance(x, tuple):
                A(x[0]); vm.issue(x[1])
            else:
                A(x)

    def reads(sig, hf):
        out = []
        buf = sig % 4
        vb = V_WRD if buf < 2 else V_WRD2
        bo = (buf % 2) * 20480
        if sig < 10:
            P = 2 * sig + hf
            for rt in range(2):
                out.append(f"ds_read_b128 {xfrag(P, rt)}, v{V_XRD0 + hf} offset:{buf * 16384 + rt * 2048}")
        for c in range(10):
            img = 2 * hf + c // 5
            t = c % 5
            for h in range(2):
                out.append(f"ds_read_b64_tr_b16 {vr(wf(hf, c) + 2 * h, 2)}, v{vb} offset:{bo + img * 5120 + h * 1280 + 32 * t}")
        return out

    def mfmas(sig, hf, rt_major=False):
        out = []
        order = [(c, rt) for c in range(10) for rt in range(2)]
        if rt_major: order = [(c, rt) for rt in range(2) for c in range(10)]
        for c, rt in order:
            t = c % 5
            W = vr(wf(hf, c), 4)
            if sig < 10:
                P = 2 * sig + hf
                X = xfrag(P, rt)
                first = (P == 0)
                if c < 5:
                    acc = vr(kacc(rt, t), 4)
                    C = acc if not first else (vr(V_INIT, 4) if isA else "0")
                    if isA: out.append(f"v_mfma_f32_16x16x32_bf16 {acc}, {X}, {W}, {C}")
                    else:   out.append(f"v_mfma_f32_16x16x32_bf16 {acc}, {W}, {X}, {C}")
                else:
                    acc = vr(vacc(rt, t), 4)
                    C = acc if not first else "0"
                    out.append(f"v_mfma_f32_16x16x32_bf16 {acc}, {X}, {W}, {C}")
            else:
                P = 4 * (sig - 10) + 2 * hf + c // 5
                X = xfrag(P, rt)
                acc = vr(qacc(rt, t), 4)
                first = (P == 0)
                C = acc if not first else (vr(V_INIT, 4) if isA else "0")
                out.append(f"v_mfma_f32_16x16x32_bf16 {acc}, {W}, {X}, {C}")
        return out
    return dict(dma_slot=dma_slot, emit_list=emit_list, reads=reads, mfmas=mfmas,
                kacc=kacc, vacc=vacc, qacc=qacc, xfrag=xfrag)

def gen_k1(A):
    A(f".globl {K1}\n.p2align 8\n.type {K1},@function\n{K1}:")
    A("s_cmp_ge_u32 s2, 256")
    A("s_cbranch_scc1 L1_end")
    ts(A, "start")
    A("s_load_dwordx16 s[16:31], s[0:1], 0")
    A("s_load_dwordx4 s[32:35], s[0:1], 64")
    A(f"s_and_b32 s{S_BR}, s2, 1")
    A(f"s_lshr_b32 s{S_T0}, s2, 1"); A(f"s_and_b32 s{S_T0}, s{S_T0}, 1")
    A(f"s_lshr_b32 s{S_T1}, s2, 2"); A(f"s_and_b32 s{S_T1}, s{S_T1}, 1")
    A(f"s_lshr_b32 s{S_T2}, s2, 3")
    A(f"s_lshl_b32 s{S_RHO}, s{S_T1}, 1"); A(f"s_add_u32 s{S_RHO}, s{S_RHO}, s{S_BR}"); A(f"s_lshl_b32 s{S_RHO}, s{S_RHO}, 2")
    A(f"s_lshl_b32 s{S_T3}, s{S_T0}, 4"); A(f"s_add_u32 s{S_RHO}, s{S_RHO}, s{S_T3}")
    A(f"s_and_b32 s{S_T3}, s{S_T2}, 3"); A(f"s_add_u32 s{S_RHO}, s{S_RHO}, s{S_T3}")
    A(f"s_lshr_b32 s{S_CG}, s{S_T2}, 2")
    A(f"s_and_b32 s{S_T3}, s{S_T2}, 7")
    A(f"s_lshl_b32 s{S_RB}, s{S_T0}, 3"); A(f"s_add_u32 s{S_RB}, s{S_RB}, s{S_T3}")
    A(f"s_lshr_b32 s{S_T2}, s{S_T2}, 3")
    A(f"s_lshl_b32 s{S_HG}, s{S_T1}, 2"); A(f"s_add_u32 s{S_HG}, s{S_HG}, s{S_T2}")
    A(f"s_mul_i32 s{S_T2}, s{S_T2}, 5"); A(f"s_lshr_b32 s{S_T2}, s{S_T2}, 1")
    A(f"s_add_u32 s{S_ROT}, s{S_T3}, s{S_T2}")
    A(f"s_cmp_ge_u32 s{S_ROT}, 10"); A(f"s_cselect_b32 s{S_T0}, 10, 0"); A(f"s_sub_u32 s{S_ROT}, s{S_ROT}, s{S_T0}")
    A(f"v_lshrrev_b32 v1, 6, v0")
    A(f"v_and_b32 v{V_LANE}, 63, v0")
    A(f"v_readfirstlane_b32 s{S_WV}, v1")
    for i in range(5):
        A(f"v_add_u32 v2, {64*i}, v{V_LANE}")
        A("v_mul_u32_u24 v3, 6554, v2"); A("v_lshrrev_b32 v3, 16, v3")
        A("v_mul_u32_u24 v4, 10, v3"); A("v_sub_u32 v4, v2, v4")
        A("v_and_b32 v5, 0x13, v3"); A("v_bfe_u32 v6, v3, 2, 1"); A("v_lshl_or_b32 v5, v6, 3, v5")
        A("v_bfe_u32 v6, v3, 3, 1"); A("v_lshl_or_b32 v5, v6, 2, v5")
        A("v_mul_u32_u24 v5, 3840, v5")
        A(f"v_lshl_add_u32 v{V_WOFF+i}, v4, 4, v5")
        if 0 < i < 4: A(f"v_subrev_u32 v{V_WOFF+i}, {1024*i}, v{V_WOFF+i}")
    A(f"s_lshl_b32 s{S_T0}, s{S_RB}, 7"); A(f"s_lshl_b32 s{S_T1}, s{S_WV}, 5"); A(f"s_add_u32 s{S_T0}, s{S_T0}, s{S_T1}")
    A(f"v_lshrrev_b32 v2, 3, v{V_LANE}")
    A(f"v_add_u32 v2, s{S_T0}, v2")
    A("v_mul_u32_u24 v2, 1280, v2")
    A(f"v_and_b32 v3, 7, v{V_LANE}"); A(f"v_lshrrev_b32 v4, 4, v{V_LANE}"); A("v_xor_b32 v3, v3, v4")
    A("v_xor_b32 v4, 4, v3")
    for i in range(4):
        A(f"v_lshl_add_u32 v{V_XOFF+i}, v{3 + (i & 1)}, 4, v2")
        if i: A(f"v_add_u32 v{V_XOFF+i}, {i * (10240 - 1024)}, v{V_XOFF+i}")
    A(f"v_lshrrev_b32 v2, 4, v{V_LANE}")
    A(f"v_bfe_u32 v3, v{V_LANE}, 2, 2")
    A(f"v_and_b32 v4, 3, v{V_LANE}")
    A("v_lshrrev_b32 v5, 1, v2"); A("v_lshl_add_u32 v5, v5, 4, v3")
    A("v_and_b32 v6, 1, v2"); A("v_lshl_add_u32 v5, v6, 2, v5")
    A("v_mul_u32_u24 v5, 160, v5")
    A(f"v_lshl_add_u32 v{V_WRD}, v4, 3, v5")
    A(f"v_add_u32 v{V_WRD2}, 40960, v{V_WRD}")
    A(f"v_and_b32 v3, 15, v{V_LANE}")
    A("v_bfe_u32 v4, v3, 1, 3"); A("v_xor_b32 v4, v4, v2")
    A("v_lshlrev_b32 v4, 4, v4"); A("v_lshl_add_u32 v4, v3, 7, v4")
    A(f"s_lshl_b32 s{S_T1}, s{S_WV}, 12"); A(f"s_add_u32 s{S_LX}, s{S_T1}, {L_X}")
    A(f"v_add_u32 v{V_XRD0}, s{S_LX}, v4")
    A(f"v_xor_b32 v{V_XRD1}, 64, v{V_XRD0}")
    A(f"s_mul_i32 s{S_LW}, s{S_WV}, 5120")
    A(f"v_lshlrev_b32 v{V_P2}, 4, v{V_LANE}")
    A(f"s_mul_i32 s{S_KW}, s{S_ROT}, 245760")
    A(f"s_lshl_b32 s{S_KX}, s{S_ROT}, 7")
    A(f"s_mul_i32 s{S_T0}, s{S_HG}, 160")
    A(f"s_lshr_b32 s{S_T1}, s{S_WV}, 1"); A(f"s_mul_i32 s{S_T1}, s{S_T1}, 122880")
    A(f"s_and_b32 s{S_T2}, s{S_WV}, 1"); A(f"s_mul_i32 s{S_T3}, s{S_T2}, 1280")
    A(f"s_add_u32 s{S_B1}, s{S_T0}, s{S_T1}"); A(f"s_add_u32 s{S_B1}, s{S_B1}, s{S_T3}"); A(f"s_add_u32 s{S_B1}, s{S_B1}, 1280")
    A(f"s_mul_i32 s{S_T3}, s{S_T2}, 122880"); A(f"s_add_u32 s{S_B2}, s{S_T0}, s{S_T3}")
    A(f"v_mov_b32 v{V_INIT}, 0x{f2u(1.0 + EPS):x}")
    for i in range(1, 4): A(f"v_mov_b32 v{V_INIT+i}, v{V_INIT}")
    A(f"s_lshl_b32 s{S_T0}, s{S_BR}, 3"); A(f"s_add_u32 s{S_T0}, s{S_T0}, s{S_HG}")
    A(f"s_lshl_b32 s{S_GROW}, s{S_T0}, 3"); A(f"s_lshl_b32 s{S_T1}, s{S_WV}, 1"); A(f"s_add_u32 s{S_GROW}, s{S_GROW}, s{S_T1}")
    A(f"s_lshl_b32 s{S_T1}, s{S_RB}, 7"); A(f"s_add_u32 s{S_GROW}, s{S_GROW}, s{S_T1}")
    A(f"v_and_b32 v7, 31, v{V_LANE}"); A("v_lshlrev_b32 v7, 4, v7")
    A(f"v_lshrrev_b32 v8, 5, v{V_LANE}"); A("v_mul_u32_u24 v8, 1280, v8"); A("v_add_u32 v8, v8, v7")
    A("v_cmp_gt_u32 vcc, 256, v7"); A("v_mov_b32 v9, 0x7000000"); A("v_cndmask_b32 v9, v9, v8, vcc")
    A(f"s_mul_i32 s96, s{S_GROW}, 1280")
    ts(A, "addr_done")
    A("s_waitcnt lgkmcnt(0)")
    ts(A, "karg")
    A(f"s_cmp_eq_u32 s{S_BR}, 0")
    A(f"s_cselect_b32 s{SRD_W}, s18, s24"); A(f"s_cselect_b32 s{SRD_W+1}, s19, s25")
    A(f"s_mov_b32 s{SRD_W+2}, 2457600"); A(f"s_mov_b32 s{SRD_W+3}, 0x20000")
    srd(A, SRD_X, 16, 17, 2621440)
    srd(A, SRD_WS, 34, 35, WS_SIZE)
    srd(A, SRD_DBG, 32, 33, 256)
    srd(A, SRD_GW, 28, 29, 1280)
    srd(A, SRD_OUT, 30, 31, 2621440)
    A("s_cbranch_scc0 L1_B")
    n0 = TSt.n; nm0 = list(TSt.names)
    k1_branch(A, 'A')
    ts_reset("K1A")
    A("L1_B:")
    A.hist = []
    TSt.n = n0; TSt.names = nm0
    k1_branch(A, 'B')
    ts_reset("K1B")
    A("L1_end:")
    A("s_endpgm")

def phi_pack_pairs(A, pairs, tmp, G=4):
    n = len(pairs)
    for g0 in range(0, n, G):
        grp = pairs[g0:g0 + G]
        for k, (s, d) in enumerate(grp):
            t = tmp + 2 * k
            A(f"v_pk_fma_f32 {vr(t,2)}, {vr(s,2)}, s[{S_C1}:{S_C1+1}], {vr(V_M,2)}")
        for k, (s, d) in enumerate(grp):
            t = tmp + 2 * k
            A(f"v_exp_f32_e64 v{t}, v{t} clamp")
            A(f"v_exp_f32_e64 v{t+1}, v{t+1} clamp")
        for k, (s, d) in enumerate(grp):
            t = tmp + 2 * k
            A(f"v_pk_add_f32 {vr(t,2)}, {vr(t,2)}, {vr(V_M+2,2)}")
        for k, (s, d) in enumerate(grp):
            t = tmp + 2 * k
            A(f"v_max_f32 v{t}, v{s}, v{t}")
            A(f"v_max_f32 v{t+1}, v{s+1}, v{t+1}")
        for k, (s, d) in enumerate(grp):
            t = tmp + 2 * k
            A(f"v_cvt_pk_bf16_f32 v{d}, v{t}, v{t+1}")

def unit_params(A):
    A(f"s_cmp_ge_u32 s2, 100"); A(f"s_cselect_b32 s91, 1, 0")
    A(f"s_mul_i32 s{S_T0}, s91, 100"); A(f"s_sub_u32 s{S_T0}, s2, s{S_T0}")
    A(f"s_mul_i32 s92, s{S_T0}, 205"); A(f"s_lshr_b32 s92, s92, 10")
    A(f"s_mul_i32 s{S_T1}, s92, 5"); A(f"s_sub_u32 s93, s{S_T0}, s{S_T1}")
    A(f"s_cmp_ge_u32 s2, 200"); A(f"s_cselect_b32 s94, 0x4000000, 0")

def unit_dma(A, vm):
    VU = V_M + 6
    unit_params(A)
    A(f"s_cmp_eq_u32 s91, 0")
    A(f"s_cselect_b32 s{SRD_WO}, s20, s26"); A(f"s_cselect_b32 s{SRD_WO+1}, s21, s27")
    A(f"s_mov_b32 s{SRD_WO+2}, 819200"); A(f"s_mov_b32 s{SRD_WO+3}, 0x20000")
    A(f"v_lshrrev_b32 v2, 4, v{V_LANE}")
    A(f"v_and_b32 v3, 15, v{V_LANE}")
    A(f"v_lshlrev_b32 v4, 1, v2")
    A(f"v_xor_b32 v3, v3, v4")
    A(f"s_and_b32 s{S_T0}, s{S_WV}, 1")
    A(f"s_lshl_b32 s{S_T0}, s{S_T0}, 3")
    A(f"v_xor_b32 v3, s{S_T0}, v3")
    A(f"v_mul_u32_u24 v2, 1280, v2")
    A(f"v_lshl_add_u32 v{VU}, v3, 4, v2")
    A(f"v_mul_u32_u24 v2, 19, v2")
    A(f"v_add_u32 v{VU+1}, v{VU}, v2")
    A("s_mul_i32 s95, s92, 52"); A("s_lshr_b32 s95, s95, 8")
    A("s_mul_i32 s96, s95, 5"); A("s_sub_u32 s96, s92, s96")
    for h in range(2):
        A(f"s_lshl_b32 s{S_T1}, s95, 1")
        A(f"s_cmp_ge_u32 s96, 2"); A(f"s_cselect_b32 s{S_T2}, 1, 0")
        A(f"s_lshl_b32 s{S_T3}, s{S_T2}, 1"); A(f"s_sub_u32 s{S_T3}, s96, s{S_T3}")
        A(f"s_lshl_b32 s{S_T3}, s{S_T3}, 1"); A(f"s_add_u32 s{S_T3}, s{S_T3}, {h}")
        A(f"s_cmp_eq_u32 s96, 4"); A(f"s_cselect_b32 s{S_T2}, {h}, s{S_T2}"); A(f"s_cselect_b32 s{S_T3}, 4, s{S_T3}")
        A(f"s_add_u32 s{S_T1}, s{S_T1}, s{S_T2}")
        A(f"s_mul_i32 s{S_T1}, s{S_T1}, 80")
        A(f"s_lshl_b32 s97, s{S_WV}, 2")
        A(f"s_lshl_b32 s98, s{S_T3}, 4"); A("s_add_u32 s98, s98, s97")
        A(f"s_mul_i32 s99, s{S_T3}, 20"); A("s_add_u32 s99, s99, s97")
        A(f"s_add_u32 s97, s{S_WV}, 16")
        A(f"s_cmp_eq_u32 s{S_T3}, 4"); A("s_cselect_b32 s99, s97, s99")
        A(f"s_cselect_b32 s97, 1, 0")
        A("s_cmp_eq_u32 s91, 0"); A("s_cselect_b32 s98, s99, s98"); A("s_cselect_b32 s97, s97, 0")
        A(f"s_add_u32 s{S_T1}, s{S_T1}, s98")
        A(f"s_mul_i32 s{S_T1}, s{S_T1}, 1280"); A(f"s_lshl_b32 s{S_T2}, s93, 8"); A(f"s_add_u32 s{S_T1}, s{S_T1}, s{S_T2}")
        A(f"s_add_u32 s{S_T1}, s{S_T1}, s94")
        A("s_cmp_eq_u32 s97, 1"); A("s_cselect_b64 vcc, -1, 0")
        A(f"v_cndmask_b32 v{VU+2}, v{VU}, v{VU+1}, vcc")
        A(f"s_lshl_b32 s{S_T2}, s{S_WV}, 11")
        A(f"s_add_u32 m0, s{S_T2}, {L_UNIT + 1024*h}")
        A(f"buffer_load_dwordx4 v{VU+2}, s[{SRD_WO}:{SRD_WO+3}], s{S_T1} offen lds"); vm.issue('wu')

def unit_store(A, vm):
    R = V_M + 8
    unit_params(A)
    A(f"v_lshrrev_b32 v2, 4, v{V_LANE}")
    A(f"v_bfe_u32 v3, v{V_LANE}, 2, 2")
    A(f"v_and_b32 v4, 3, v{V_LANE}")
    A("v_lshl_add_u32 v5, v2, 3, v3"); A("v_lshlrev_b32 v5, 8, v5")
    A("v_and_b32 v6, 1, v4"); A("v_lshl_add_u32 v5, v6, 3, v5")
    A("v_lshlrev_b32 v6, 1, v3"); A("v_and_b32 v7, 1, v2"); A("v_lshl_or_b32 v6, v7, 3, v6")
    A("v_lshrrev_b32 v7, 1, v4"); A("v_or_b32 v6, v6, v7")
    A(f"s_lshl_b32 s{S_T0}, s{S_WV}, 2")
    A(f"v_xor_b32 v7, s{S_T0}, v6"); A("v_lshl_add_u32 v8, v7, 4, v5")
    A("v_xor_b32 v7, 2, v7"); A("v_lshl_add_u32 v9, v7, 4, v5")
    A(f"v_add_u32 v8, {L_UNIT}, v8"); A(f"v_add_u32 v9, {L_UNIT}, v9")
    for e in range(2):
        for h in range(2):
            A(f"ds_read_b64_tr_b16 {vr(R + 4*e + 2*h, 2)}, v{8+e} offset:{1024*h}")
    for e in range(2):
        A(f"s_lshl_b32 s{S_T0}, s93, 3"); A(f"s_lshl_b32 s{S_T1}, s{S_WV}, 1"); A(f"s_add_u32 s{S_T0}, s{S_T0}, s{S_T1}")
        if e: A(f"s_add_u32 s{S_T0}, s{S_T0}, 1")
        A(f"s_mul_i32 s{S_T1}, s{S_T0}, 52"); A(f"s_lshr_b32 s{S_T1}, s{S_T1}, 8")
        A(f"s_mul_i32 s{S_T2}, s{S_T1}, 5"); A(f"s_sub_u32 s{S_T2}, s{S_T0}, s{S_T2}")
        A(f"s_lshl_b32 s{S_T3}, s91, 3"); A(f"s_add_u32 s{S_T1}, s{S_T1}, s{S_T3}")
        A(f"s_mul_i32 s{S_T1}, s{S_T1}, 20"); A(f"s_add_u32 s{S_T1}, s{S_T1}, s92")
        A(f"s_mul_i32 s{S_T1}, s{S_T1}, 5"); A(f"s_add_u32 s{S_T1}, s{S_T1}, s{S_T2}")
        A(f"s_lshl_b32 s{S_T1}, s{S_T1}, 10"); A(f"s_add_u32 s{S_T1}, s{S_T1}, {WS_WP}")
        A(f"s_add_u32 s{S_T1}, s{S_T1}, s94")
        if e == 0: A("s_waitcnt lgkmcnt(0)")
        A(f"buffer_store_dwordx4 {vr(R + 4*e, 4)}, v{V_P2}, {WSD}, s{S_T1} offen sc1"); vm.issue('wus')

def flag_store(A, saddr):
    A("v_mov_b32 v3, 0")
    A("s_mov_b64 exec, 1")
    A(f"buffer_store_dwordx2 {vr(V_NON,2)}, v3, {WSD}, s{saddr} offen sc1")
    A("s_mov_b64 exec, -1")

def check_flags(A, mask=None):
    def f():
        A(f"v_cmp_eq_u64 vcc, s[{S_NON}:{S_NON+1}], {vr(V_POLL,2)}")
        if mask is None:
            A("s_nop 0")
            A("s_cmp_eq_u64 vcc, -1")
        else:
            set_mask(A, 94, mask)
            A("s_and_b64 vcc, vcc, s[94:95]")
            A("s_cmp_eq_u64 vcc, s[94:95]")
    return f

def wg_id_of(A, vdst, vbr, vrb, vhg, t0, t1):
    A(f"v_lshrrev_b32 v{t0}, 3, v{vrb}"); A(f"v_lshl_add_u32 v{vdst}, v{t0}, 1, v{vbr}")
    A(f"v_lshrrev_b32 v{t0}, 2, v{vhg}"); A(f"v_lshl_add_u32 v{vdst}, v{t0}, 2, v{vdst}")
    A(f"v_and_b32 v{t0}, 3, v{vhg}"); A(f"v_and_b32 v{t1}, 7, v{vrb}"); A(f"v_lshl_add_u32 v{t0}, v{t0}, 3, v{t1}")
    A(f"v_lshl_add_u32 v{vdst}, v{t0}, 3, v{vdst}")

V_EDA = 249
def ed_poll_addr(A):
    l = V_LANE
    A(f"v_cmp_le_u32 vcc, 10, v{l}"); A("v_cndmask_b32 v2, 0, 1, vcc" if False else "v_cndmask_b32_e64 v2, 0, 1, vcc")
    A(f"v_mul_u32_u24 v3, 10, v2"); A(f"v_sub_u32 v3, v{l}, v3")
    A("v_lshrrev_b32 v4, 1, v3"); A(f"s_mul_i32 s{S_T0}, s{S_WV}, 5"); A(f"v_add_u32 v4, s{S_T0}, v4")
    A("v_mul_u32_u24 v4, 5, v4"); A("v_mul_u32_u24 v5, 100, v2"); A("v_add_u32 v4, v4, v5")
    A(f"s_mul_i32 s{S_T0}, s{S_CG}, 80"); A(f"s_lshr_b32 s{S_T1}, s{S_T0}, 7"); A(f"s_add_u32 s{S_T0}, s{S_T0}, 79"); A(f"s_lshr_b32 s{S_T0}, s{S_T0}, 7")
    A("v_and_b32 v3, 1, v3"); A("v_cmp_eq_u32 vcc, 1, v3")
    A(f"v_mov_b32 v5, s{S_T1}"); A(f"v_mov_b32 v6, s{S_T0}"); A("v_cndmask_b32 v5, v5, v6, vcc")
    A("v_add_u32 v4, v4, v5")
    A(f"s_lshl_b32 s{S_T0}, s{S_WV}, 2"); A(f"s_sub_u32 s{S_T0}, s{S_T0}, 20"); A(f"v_add_u32 v2, s{S_T0}, v{l}")
    A("v_and_b32 v2, 15, v2")
    A("v_lshrrev_b32 v3, 3, v2"); A("v_and_b32 v2, 7, v2"); A(f"v_mov_b32 v5, s{S_RB}")
    wg_id_of(A, 6, 3, 5, 2, 7, 8)
    A(f"v_cmp_le_u32 vcc, 20, v{l}"); A("v_cndmask_b32 v4, v4, v6, vcc")
    A(f"v_subrev_u32 v5, 24, v{l}"); A("v_and_b32 v5, 15, v5"); A("v_mov_b32 v3, 0"); A(f"v_mov_b32 v2, s{S_HG}")
    wg_id_of(A, 6, 3, 5, 2, 7, 8)
    A(f"v_cmp_le_u32 vcc, 24, v{l}"); A("v_cndmask_b32 v4, v4, v6, vcc")
    A(f"v_lshlrev_b32 v{V_EDA}, 7, v4")
ED_LD = f"buffer_load_dwordx2 {vr(252,2)}, v{V_EDA}, {WSD}, s71 offen sc1"

def k1_branch(A, br):
    isA = br == 'A'
    vm = VM()
    M = k1_main(A, vm, br)
    emit_list, dma_slot, reads, mfmas = (M[k] for k in ('emit_list', 'dma_slot', 'reads', 'mfmas'))
    L = f"L1{br}_"
    GX, GW = V_QACC, V_QACC + 12
    GWD = f"s[{SRD_GW}:{SRD_GW+3}]"; XD = f"s[{SRD_X}:{SRD_X+3}]"
    def gate_loads():
        for j in range(3):
            A(f"buffer_load_dwordx4 {vr(GX+4*j,4)}, v{8 if j < 2 else 9}, {XD}, s96 offen offset:{512*j}"); vm.issue('gx')
            A(f"buffer_load_dwordx4 {vr(GW+4*j,4)}, v7, {GWD}, 0 offen offset:{512*j}"); vm.issue('gx')
    def gate_compute():
        vm.wait(A, 'gx')
        acc = 2
        for j in range(3):
            for k in range(4):
                C = "0" if (j == 0 and k == 0) else f"v{acc}"
                A(f"v_dot2_f32_bf16 v{acc}, v{GX+4*j+k}, v{GW+4*j+k}, {C}")
        A("s_nop 3")
        for sh in (1, 2, 4, 8):
            A(f"v_add_f32_dpp v{acc}, v{acc}, v{acc} row_shr:{sh} row_mask:0xf bank_mask:0xf bound_ctrl:0")
        A(f"v_add_f32_dpp v{acc}, v{acc}, v{acc} row_bcast:15 row_mask:0xa bank_mask:0xf")
        A(f"v_mul_f32 v{acc}, 0x{f2u(-LOG2E):x}, v{acc}")
        A(f"v_exp_f32 v{acc}, v{acc}")
        A(f"v_add_f32 v{acc}, 1.0, v{acc}")
        A(f"v_rcp_f32 v{acc}, v{acc}")
        A(f"v_lshrrev_b32 v3, 5, v{V_LANE}"); A("v_lshlrev_b32 v3, 2, v3")
        A(f"s_lshl_b32 s{S_T0}, s{S_GROW}, 5"); A(f"s_add_u32 s{S_T0}, s{S_T0}, {WS_GATE}")
        set_exec(A, lambda l: l in (31, 63))
        A(f"buffer_store_dword v{acc}, v3, {WSD}, s{S_T0} offen sc1"); vm.issue('gst')
        A("s_mov_b64 exec, -1")
    stream = []
    for sig in range(15):
        cur = []
        for x in dma_slot(sig):
            cur.append(x)
            if isinstance(x, tuple):
                stream.append((sig, cur)); cur = []
        if cur: stream[-1][1].extend(cur)
    spos = [0]
    def take(n, maxslot):
        out = []
        while n > 0 and spos[0] < len(stream) and stream[spos[0]][0] <= maxslot:
            out.append(stream[spos[0]][1]); spos[0] += 1; n -= 1
        return out
    for gi, g in enumerate(take(PRO_N, 3)):
        emit_list(g)
        if gi in (0, 8): ts(A, f"d{gi}")
    ts(A, "pro_issued")
    if isA:
        A(f"s_lshl_b32 s{S_T0}, s2, 2"); A(f"s_add_u32 s{S_T0}, s{S_T0}, s{S_WV}")
        A(f"s_cmp_lg_u32 s{S_T0}, 0"); A(f"s_cbranch_scc1 {L}nn")
        A("s_memrealtime s[98:99]")
        A("s_waitcnt lgkmcnt(0)")
        A("s_or_b32 s98, s98, 1"); A("s_or_b32 s99, s99, 0x80000000")
        A("v_mov_b32 v2, s98"); A("v_mov_b32 v3, s99"); A("v_mov_b32 v4, 0")
        A("s_mov_b64 exec, 1")
        A(f"buffer_store_dwordx2 v[2:3], v4, {DBGD}, 0 offen sc1")
        A("s_mov_b64 exec, -1")
        A(f"{L}nn:")
        A(f"s_cmp_lg_u32 s{S_WV}, 0"); A(f"s_cbranch_scc1 {L}nz")
        A(f"s_lshl_b32 s{S_T0}, s{S_HG}, 13"); A(f"s_lshl_b32 s{S_T1}, s{S_RB}, 9"); A(f"s_add_u32 s{S_T0}, s{S_T0}, s{S_T1}")
        A(f"s_add_u32 s{S_T0}, s{S_T0}, {WS_KV}")
        A("v_mov_b32 v2, 0"); A("v_mov_b32 v3, 0"); A("v_mov_b32 v4, 0"); A("v_mov_b32 v5, 0")
        A("s_mov_b32 exec_hi, 0")
        A(f"buffer_store_dwordx4 v[2:5], v{V_P2}, {WSD}, s{S_T0} offen sc1")
        A("s_mov_b32 exec_hi, -1")
        A(f"{L}nz:")
        A(f"s_mov_b32 s{S_C1}, 0x{f2u(LOG2E):x}"); A(f"s_mov_b32 s{S_C1+1}, 0x{f2u(LOG2E):x}")
        A(f"v_mov_b32 v{V_M}, 0x{f2u(-(1.0+EPS)*LOG2E):x}"); A(f"v_mov_b32 v{V_M+1}, v{V_M}")
        A(f"v_mov_b32 v{V_M+2}, 0x{f2u(EPS):x}"); A(f"v_mov_b32 v{V_M+3}, v{V_M+2}")
    gate_loads()
    ed_poll_addr(A)
    vm.wait(A, 's0')
    A("s_barrier")
    ts(A, "s0_ready")
    emit_list(reads(0, 0))
    A("s_waitcnt lgkmcnt(0)")

    def phase2(mf, rd, groups, extra=()):
        n = len(mf)
        fill = list(extra) + list(rd)
        pos = {}
        for k, g in enumerate(groups):
            pos.setdefault(min(n - 1, (k * n) // max(1, len(groups)) + PH_OFF), []).append(g)
        fi = 0
        for i, m in enumerate(mf):
            A(m)
            used = 0
            for g in pos.get(i, []):
                emit_list(g); used += 2
            for _ in range(max(1, 3 - used)):
                if fi < len(fill):
                    emit_list([fill[fi]]); fi += 1
        emit_list(fill[fi:])

    def iteration(sig, also_wait=(), after_barrier=None, mid14=None):
        last = (sig == 14)
        q0 = Q_EARLY if sig < N_EARLY else Q0
        q1 = Q_EARLY if sig < N_EARLY else Q1
        phase2(mfmas(sig, 0), reads(sig, 1), take(q0, sig + 3))
        if not last:
            for g in take(100, sig + 1): emit_list(g)
            vm.wait(A, f's{sig+1}', *also_wait, lgkm=True)
            A("s_barrier")
            if after_barrier: after_barrier()
            phase2(mfmas(sig, 1), reads(sig + 1, 0), take(q1, sig + 4))
            A("s_waitcnt lgkmcnt(0)")
        else:
            A("s_waitcnt lgkmcnt(0)")
            mid14()
            for m in mfmas(sig, 1, rt_major=True): A(m)

    NON_LD = f"buffer_load_dwordx2 {vr(V_POLL,2)}, v{V_M+4}, {DBGD}, 0 offen sc1"
    for sig in range(10):
        if sig == 2:
            iteration(sig, also_wait=('wu',))
            unit_store(A, vm)
        elif sig == 4:
            def edflag():
                l = newlbl("w0")
                A(f"s_cmp_lg_u32 s{S_WV}, 0"); A(f"s_cbranch_scc1 {l}")
                A("s_lshl_b32 s90, s2, 7"); A(f"s_add_u32 s90, s90, {WS_FLG + FL_ED}")
                flag_store(A, 90)
                A(f"{l}:")
            iteration(sig, also_wait=('wus', 'gst'), after_barrier=edflag)
        else:
            iteration(sig)
        if sig == 0:
            unit_dma(A, vm)
        if sig == 1:
            gate_compute()
            A(f"v_mov_b32 v{V_M+4}, 0")
            A(NON_LD); vm.issue('non')
        if sig == 3:
            def chk():
                A(f"v_readfirstlane_b32 s{S_NON}, v{V_POLL}"); A(f"v_readfirstlane_b32 s{S_NON+1}, v{V_POLL+1}")
                A(f"s_cmp_lg_u32 s{S_NON}, 0"); A(f"s_cselect_b32 s90, s{S_NON+1}, 0"); A("s_cmp_lg_u32 s90, 0")
            poll(A, vm, 'non', NON_LD, chk)
            A(f"v_mov_b32 v{V_NON}, s{S_NON}"); A(f"v_mov_b32 v{V_NON+1}, s{S_NON+1}")
        if sig == 8:
            A(f"s_mov_b32 s71, {WS_FLG + FL_ED}")
            A(ED_LD); vm.issue('edp')
        if sig in (0, 1, 2, 4, 6, 8, 9): ts(A, f"it{sig}")
    poll(A, vm, 'edp', ED_LD, check_flags(A, lanemask(lambda l: l < (40 if isA else 24))))
    ts(A, "ed_ok")
    if isA: k1_A_mid(A, vm, M)
    else:   k1_B_mid(A, vm, M)
    ts(A, "mid")
    KVF_IT = _arg('kvfit', 13)
    for sig in range(10, 15):
        ab = None; aw = ()
        if isA and sig == KVF_IT:
            aw = ('kvat',)
            def ab():
                A(f"s_lshl_b32 s91, s{S_HG}, 2"); A(f"s_add_u32 s91, s91, s{S_WV}"); A("s_lshl_b32 s91, s91, 4"); A(f"s_add_u32 s91, s91, s{S_RB}")
                A("s_lshl_b32 s91, s91, 7"); A(f"s_add_u32 s91, s91, {WS_FLG + FL_KVD}")
                flag_store(A, 91); vm.issue('kvf')
        if (not isA) and sig == 12:
            def ab():
                l = newlbl("hf")
                A(f"s_cmp_lg_u32 s{S_WV}, 3"); A(f"s_cbranch_scc1 {l}")
                A(f"s_waitcnt vmcnt({len(vm.ops) - vm.halo_marker})")
                A(f"s_lshl_b32 s92, s{S_HG}, 4"); A(f"s_add_u32 s92, s92, s{S_RB}"); A("s_lshl_b32 s92, s92, 7"); A(f"s_add_u32 s92, s92, {WS_FLG + FL_HF}")
                flag_store(A, 92)
                A(f"{l}:")
        iteration(sig, also_wait=aw, after_barrier=ab, mid14=(lambda: pre_tail_loads(A, vm, isA)))
        if sig == 11:
            gate_data_loads(A, vm)
        ts(A, f"it{sig}")
    P2 = Phase2(A, vm)
    if isA: k1_A_end(A, vm, M, P2)
    else:   k1_B_end(A, vm, M, P2)
    P2.run()
    ts(A, "end"); ts_store(A, SRD_WS)
    A("s_endpgm")

def gate_data_loads(A, vm):
    A(f"v_and_b32 v2, 15, v{V_LANE}")
    A("v_lshrrev_b32 v3, 1, v2"); A("v_lshlrev_b32 v3, 6, v3"); A("v_and_b32 v2, 1, v2"); A("v_lshl_add_u32 v3, v2, 2, v3")
    A(f"s_lshl_b32 s{S_T0}, s{S_RB}, 6"); A(f"s_lshl_b32 s{S_T1}, s{S_WV}, 4"); A(f"s_add_u32 s{S_T0}, s{S_T0}, s{S_T1}")
    A(f"s_lshl_b32 s{S_T0}, s{S_T0}, 6"); A(f"s_add_u32 s{S_T0}, s{S_T0}, {WS_GATE}")
    for rt in range(2):
        A(f"buffer_load_dword v{V_G+rt}, v3, {WSD}, s{S_T0} offen offset:{512*rt} sc1"); vm.issue('gl')

def pre_tail_loads(A, vm, isA):
    if isA:
        A(f"v_and_b32 v{V_M+5}, 15, v{V_LANE}"); A(f"v_lshlrev_b32 v{V_M+5}, 7, v{V_M+5}")
        A(f"s_lshl_b32 s{S_U0}, s{S_HG}, 2"); A(f"s_add_u32 s{S_U0}, s{S_U0}, s{S_WV}"); A(f"s_lshl_b32 s{S_U0}, s{S_U0}, 11")
        A(f"s_add_u32 s{S_U0}, s{S_U0}, {WS_FLG + FL_KVD}")
    else:
        A(f"s_lshl_b32 s{S_U0}, s{S_HG}, 4"); A(f"s_add_u32 s{S_U0}, s{S_U0}, s{S_RB}"); A(f"s_lshl_b32 s{S_U0}, s{S_U0}, 7")
        A(f"s_add_u32 s{S_U0}, s{S_U0}, {WS_FLG + FL_HF - 128}")
        A(f"v_mov_b32 v{V_M+5}, 0")
    A(KV_POLL()); vm.issue('kvp')
def KV_POLL():
    return f"buffer_load_dwordx2 {vr(V_POLL,2)}, v{V_M+5}, {WSD}, s{S_U0} offen sc1"

def gate_check(A, vm):
    vm.wait(A, 'gl')

def k1_A_mid(A, vm, M):
    L = "L1A_"
    TMP = V_QACC
    for t in range(5):
        b = V_VACC + 8 * t
        for k in range(4):
            A(f"v_cvt_pk_bf16_f32 v{b+k}, v{b+2*k}, v{b+2*k+1}")
    pairs = []
    for t in range(5):
        b = V_KACC + 8 * t
        for k in range(4):
            pairs.append((b + 2 * k, b + k))
    phi_pack_pairs(A, pairs, TMP)
    i_, g_ = 2, 3
    A(f"v_and_b32 v{i_}, 15, v{V_LANE}"); A(f"v_lshrrev_b32 v{g_}, 4, v{V_LANE}")
    A(f"s_lshl_b32 s{S_T0}, s{S_WV}, 6")
    A(f"v_lshl_add_u32 v4, v{g_}, 4, s{S_T0}")
    A(f"v_mul_u32_u24 v5, 272, v{i_}")
    A("v_add_u32 v5, v5, v4")
    A(f"v_add_u32 v6, {L_KREG}, v5")
    for t in range(5):
        A(f"ds_write_b128 v6, {vr(V_KACC + 8*t, 4)} offset:{t * 16 * 272}")
    for t in range(5):
        lo = (16 * t) // 20; hi = (16 * t + 15) // 20
        if lo == hi:
            A(f"v_add_u32 v7, {L_VREG + (16*t + lo) * 272}, v5")
            A(f"ds_write_b128 v7, {vr(V_VACC + 8*t, 4)}")
        else:
            thr = hi * 20 - 16 * t
            A(f"v_cmp_le_u32 vcc, {thr}, v{i_}")
            A(f"v_mov_b32 v7, {L_VREG + (16*t + lo) * 272}")
            A(f"v_mov_b32 v8, {L_VREG + (16*t + hi) * 272}")
            A("v_cndmask_b32 v7, v7, v8, vcc")
            A("v_add_u32 v7, v7, v5")
            A(f"ds_write_b128 v7, {vr(V_VACC + 8*t, 4)}")
    A(f"v_mul_u32_u24 v7, {21*272}, v{i_}")
    A("v_add_u32 v7, v7, v4")
    A(f"v_add_u32 v7, {L_VREG + 20*272}, v7")
    for k in range(4): A(f"v_mov_b32 v{TMP+k}, 0x3f803f80")
    set_exec(A, lambda l: (l & 15) < 4)
    A(f"ds_write_b128 v7, {vr(TMP,4)}")
    A("s_mov_b64 exec, -1")
    A(f"s_mul_i32 s{S_T0}, s{S_WV}, {20*272}"); A(f"s_add_u32 s{S_T0}, s{S_T0}, {L_KREG}")
    A(f"s_mul_i32 s{S_T1}, s{S_WV}, {21*272}"); A(f"s_add_u32 s{S_T1}, s{S_T1}, {L_VREG}")
    A(f"v_mul_u32_u24 v5, 272, v{i_}")
    A(f"v_lshl_add_u32 v5, v{g_}, 4, v5")
    A(f"v_add_u32 v6, s{S_T0}, v5")
    A(f"v_add_u32 v7, s{S_T1}, v5")
    A("s_waitcnt lgkmcnt(0)")
    A("s_barrier")
    OP = V_KACC
    for ws in range(4):
        o = OP + 16 * ws
        A(f"ds_read_b128 {vr(o,4)}, v6 offset:{64*ws}")
        A(f"ds_read_b128 {vr(o+4,4)}, v6 offset:{64*ws + 16*272}")
        A(f"ds_read_b128 {vr(o+8,4)}, v7 offset:{64*ws}")
        A(f"ds_read_b128 {vr(o+12,4)}, v7 offset:{64*ws + 16*272}")
    T = V_QACC
    for ws in range(4):
        o = OP + 16 * ws
        A(f"s_waitcnt lgkmcnt({12 - 4*ws})")
        C = lambda k: ("0" if ws == 0 else vr(T + 4*k, 4))
        A(f"v_mfma_f32_16x16x32_bf16 {vr(T,4)}, {vr(o+8,4)}, {vr(o,4)}, {C(0)}")
        A(f"v_mfma_f32_16x16x32_bf16 {vr(T+4,4)}, {vr(o+12,4)}, {vr(o,4)}, {C(1)}")
        A(f"v_mfma_f32_16x16x32_bf16 {vr(T+8,4)}, {vr(o+8,4)}, {vr(o+4,4)}, {C(2)}")
        A(f"v_mfma_f32_16x16x32_bf16 {vr(T+12,4)}, {vr(o+12,4)}, {vr(o+4,4)}, {C(3)}")
    A(f"s_sub_u32 s{S_T0}, 4, s{S_WV}")
    A(f"s_add_u32 s{S_T1}, s{S_WV}, 1")
    A(f"s_lshl_b32 s{S_T2}, s{S_T0}, 4")
    A(f"s_lshl_b32 s{S_T3}, s{S_T1}, 4")
    A(f"s_mul_i32 s94, s{S_T0}, 320")
    A(f"v_lshrrev_b32 v4, 2, v{i_}")
    A(f"v_cmp_gt_u32 vcc, s{S_T0}, v4")
    A(f"v_mov_b32 v5, s{S_T3}"); A(f"v_mov_b32 v6, s{S_T2}")
    A("v_cndmask_b32 v5, v5, v6, vcc")
    A(f"v_mov_b32 v6, s94"); A("v_cndmask_b32 v6, v6, 0, vcc")
    A(f"v_lshl_add_u32 v6, v{i_}, 2, v6")
    AD = V_M + 6
    A(f"v_mad_u32_u24 v{AD}, v{g_}, v5, v6")
    A(f"v_lshlrev_b32 v7, 2, v5")
    for j in range(1, 4): A(f"v_add_u32 v{AD+j}, v{AD+j-1}, v7")
    A(f"v_lshl_add_u32 v8, v{g_}, 2, 16")
    A(f"v_mad_u32_u24 v{AD+4}, v8, v5, v6")
    for j in range(1, 4): A(f"v_add_u32 v{AD+4+j}, v{AD+4+j-1}, v5")
    A(f"s_mul_i32 s95, s{S_T0}, 336"); A(f"s_lshl_b32 s94, s{S_WV}, 4"); A(f"s_add_u32 s95, s95, s94")
    A(f"v_lshl_add_u32 v6, v{i_}, 2, s95")
    A(f"v_mad_u32_u24 v{AD+8}, v{g_}, s{S_T3}, v6")
    A(f"v_mad_u32_u24 v{AD+9}, v8, s{S_T3}, v6")
    A(f"s_lshl_b32 s{S_T0}, s{S_HG}, 2"); A(f"s_add_u32 s{S_T0}, s{S_T0}, s{S_WV}"); A(f"s_lshl_b32 s{S_T0}, s{S_T0}, 11")
    A(f"s_add_u32 s93, s{S_T0}, {WS_KV}")
    KB = 93
    A(f"s_lshl_b32 s94, s{S_T3}, 2")
    A(f"s_add_u32 s90, s{KB}, s94"); A(f"s_add_u32 s91, s90, s94"); A(f"s_add_u32 s92, s91, s94")
    A(f"s_add_u32 s96, s{KB}, s{S_T3}"); A(f"s_add_u32 s97, s96, s{S_T3}"); A(f"s_add_u32 s98, s97, s{S_T3}")
    ts(A, "mid_mfma")
    A.flush_hazards()
    def at(v, a, so):
        A(f"buffer_atomic_add_f32 v{v}, v{a}, {WSD}, s{so} offen"); vm.issue('kvat')
    for j in range(4): at(T+j, AD+j, KB)
    set_exec(A, lambda l: l < 32)
    at(T+4, AD+4, KB)
    set_exec(A, lambda l: l < 16)
    for j in range(1, 4): at(T+4+j, AD+4+j, KB)
    set_exec(A, lambda l: (l & 15) < 4)
    for j in range(4): at(T+8+j, AD+8, KB if j == 0 else 89 + j)
    set_exec(A, lambda l: (l & 15) < 4 and l < 32)
    at(T+12, AD+9, KB)
    set_exec(A, lambda l: l < 4)
    for j in range(1, 4): at(T+12+j, AD+9, 95 + j)
    A("s_mov_b64 exec, -1")
    A("s_nop 7")

def f_store_base(A, brv):
    A(f"s_lshl_b32 s{S_T0}, s{S_RB}, 3"); A(f"s_lshl_b32 s{S_T1}, s{S_WV}, 1"); A(f"s_add_u32 s{S_T0}, s{S_T0}, s{S_T1}")
    if brv: A(f"s_add_u32 s{S_T0}, s{S_T0}, 128")
    A(f"s_lshl_b32 s{S_T0}, s{S_T0}, 3"); A(f"s_add_u32 s{S_T0}, s{S_T0}, s{S_HG}")
    A(f"s_mul_i32 s{S_U0}, s{S_T0}, 2560")
    if WS_F: A(f"s_add_u32 s{S_U0}, s{S_U0}, {WS_F}")

def f_stores(A, vm, O, rt, V_L8):
    if rt: A(f"s_add_u32 s{S_SO}, s{S_U0}, 20480")
    else:  A(f"s_mov_b32 s{S_SO}, s{S_U0}")
    A(f"buffer_store_dwordx4 {vr(O,4)}, v{V_P2}, {WSD}, s{S_SO} offen sc1"); vm.issue('ost')
    A(f"buffer_store_dwordx4 {vr(O+4,4)}, v{V_P2}, {WSD}, s{S_SO} offen offset:1024 sc1"); vm.issue('ost')
    A(f"buffer_store_dwordx2 {vr(O+8,2)}, v{V_L8}, {WSD}, s{S_SO} offen offset:2048 sc1"); vm.issue('ost')

def k1_A_end(A, vm, M, P2):
    qacc = M['qacc']
    L = "L1A_"
    TMP = V_WF
    P2.setup_w()
    def phi_rt(rt):
        pairs = []
        for t_ in range(5):
            b = qacc(rt, t_)
            for k in range(2):
                pairs.append((b + 2 * k, V_QACC + 20 * rt + 2 * t_ + k))
        A.filler = P2.wfill
        phi_pack_pairs(A, pairs, TMP)
        A.filler = None
    t = V_KACC + 20
    i_, g16, r1, r2, big, g_ = t, t+1, t+2, t+3, t+4, t+5
    KO = V_KACC + 16
    A(f"v_and_b32 v{i_}, 15, v{V_LANE}")
    A(f"v_and_b32 v{g16}, 48, v{V_LANE}")
    A(f"v_lshrrev_b32 v{g_}, 4, v{V_LANE}")
    A(f"v_and_b32 v{r1}, 3, v{i_}"); A(f"v_lshlrev_b32 v{r1}, 6, v{r1}")
    A(f"v_lshrrev_b32 v{r2}, 2, v{i_}")
    A(f"v_lshl_add_u32 v{r1}, v{r2}, 4, v{r1}")
    A(f"v_mov_b32 v{big}, 0x800000")
    A(f"v_lshlrev_b32 v{r2}, 4, v{r2}")
    A(f"v_add_u32 v{r2}, 256, v{r2}")
    set_mask(A, 90, lanemask(lambda l: (l & 3) == 1))
    set_mask(A, 92, lanemask(lambda l: (l & 3) >= 2))
    A(f"v_mov_b32 v{t+6}, 320")
    A(f"v_cndmask_b32 v{r2}, v{r2}, v{t+6}, s[90:91]")
    A(f"v_cndmask_b32 v{r2}, v{r2}, v{big}, s[92:93]")
    A(f"s_sub_u32 s{S_T0}, 4, s{S_WV}")
    A(f"s_add_u32 s{S_T1}, s{S_WV}, 1")
    A(f"s_lshl_b32 s{S_T2}, s{S_WV}, 4")
    A(f"s_mul_i32 s{S_T3}, s{S_T0}, 336")
    A(f"v_subrev_u32 v{t+6}, s{S_T2}, v{g16}")
    A(f"v_add_u32 v{t+7}, s{S_T3}, v{g16}")
    A(f"v_cmp_le_u32 s[90:91], s{S_WV}, v{g_}")
    A(f"v_cmp_ge_u32 s[92:93], s{S_WV}, v{g_}")
    for k, R in enumerate((r1, r2)):
        lo, hi = KO + 2 * k, KO + 2 * k + 1
        A(f"v_mad_u32_u24 v{lo}, v{R}, s{S_T0}, v{t+6}")
        A(f"v_cndmask_b32 v{lo}, v{big}, v{lo}, s[90:91]")
        A(f"v_mad_u32_u24 v{hi}, v{R}, s{S_T1}, v{t+7}")
        A(f"v_cndmask_b32 v{hi}, v{big}, v{hi}, s[92:93]")
    A(f"s_lshl_b32 s{S_T0}, s{S_HG}, 2"); A(f"s_add_u32 s{S_T0}, s{S_T0}, s{S_WV}"); A(f"s_lshl_b32 s{S_T0}, s{S_T0}, 11")
    A(f"s_add_u32 s94, s{S_T0}, {WS_KV}")
    KR = V_KACC
    phi_rt(0)
    poll(A, vm, 'kvp', KV_POLL(), check_flags(A))
    ts(A, "kv_ok")
    for kind in range(4):
        A(f"buffer_load_dwordx4 {vr(KR + 4*kind, 4)}, v{KO + kind}, {WSD}, s{S_U0+1 if False else 94} offen sc1"); vm.issue('kvl')
    phi_rt(1)
    ts(A, "phi")
    vm.wait(A, 'kvl')
    KP = V_KACC + 24
    for k in range(8): A(f"v_cvt_pk_bf16_f32 v{KP+k}, v{KR+2*k}, v{KR+2*k+1}")
    A(f"s_lshl_b32 s{S_T0}, s{S_WV}, 11"); A(f"s_add_u32 s{S_T0}, s{S_T0}, {L_KVX}")
    A(f"v_add_u32 v2, s{S_T0}, v{V_P2}")
    A(f"ds_write_b128 v2, {vr(KP,4)}")
    A(f"ds_write_b128 v2, {vr(KP+4,4)} offset:1024")
    A(f"v_add_u32 v3, {L_KVX}, v{V_P2}")
    f_store_base(A, 0)
    A(f"v_lshlrev_b32 v9, 3, v{V_LANE}")
    CIN = V_M + 8
    A(f"v_mov_b32 v{CIN}, 0"); A(f"v_mov_b32 v{CIN+1}, 0x{f2u(EPS):x}"); A(f"v_mov_b32 v{CIN+2}, 0"); A(f"v_mov_b32 v{CIN+3}, 0")
    A("s_waitcnt lgkmcnt(0)")
    A("s_barrier")
    KO_ = V_KACC + 32
    for h in range(4):
        A(f"ds_read_b128 {vr(KO_ + 8*h, 4)}, v3 offset:{2048*h}")
        A(f"ds_read_b128 {vr(KO_ + 8*h + 4, 4)}, v3 offset:{2048*h + 1024}")
    gate_check(A, vm)
    A("s_waitcnt lgkmcnt(0)")
    ts(A, "kv_lds")
    DT = V_WF + 8
    OO = V_KACC
    def oc_mfma(rt):
        out = []
        for h in range(4):
            B = vr(V_QACC + 20*rt + 2*h, 4)
            D1 = DT + 32*rt + 4*h; D2 = DT + 32*rt + 16 + 4*h
            out.append(f"v_mfma_f32_16x16x32_bf16 {vr(D2,4)}, {vr(KO_ + 8*h + 4,4)}, {B}, {vr(CIN,4)}")
            out.append(f"v_mfma_f32_16x16x32_bf16 {vr(D1,4)}, {vr(KO_ + 8*h,4)}, {B}, 0")
        return out
    def oc_valu(rt):
        out = []
        D1 = lambda h: DT + 32*rt + 4*h
        D2 = lambda h: DT + 32*rt + 16 + 4*h
        O = OO + 12 * rt
        for h in range(4): out.append(f"v_rcp_f32 v{D2(h)+2}, v{D2(h)+1}")
        for h in range(4): out.append(f"v_mul_f32 v{D2(h)+2}, v{D2(h)+2}, v{V_G+rt}")
        for h in range(4):
            out.append(f"v_pk_mul_f32 {vr(D1(h),2)}, {vr(D1(h),2)}, {vr(D2(h)+2,2)} op_sel_hi:[1,0]")
            out.append(f"v_pk_mul_f32 {vr(D1(h)+2,2)}, {vr(D1(h)+2,2)}, {vr(D2(h)+2,2)} op_sel_hi:[1,0]")
            out.append(f"v_mul_f32 v{D2(h)}, v{D2(h)}, v{D2(h)+2}")
        for h in range(4):
            out.append(f"v_cvt_pk_bf16_f32 v{O+2*h}, v{D1(h)}, v{D1(h)+1}")
            out.append(f"v_cvt_pk_bf16_f32 v{O+2*h+1}, v{D1(h)+2}, v{D1(h)+3}")
        out.append(f"v_cvt_pk_bf16_f32 v{O+8}, v{D2(0)}, v{D2(1)}")
        out.append(f"v_cvt_pk_bf16_f32 v{O+9}, v{D2(2)}, v{D2(3)}")
        return out
    for m in oc_mfma(0): A(m)
    for m in oc_mfma(1): A(m)
    for x in oc_valu(0): A(x)
    f_stores(A, vm, OO, 0, 9)
    for x in oc_valu(1): A(x)
    f_stores(A, vm, OO + 12, 1, 9)
    ts(A, "o_stored")

def k1_B_mid(A, vm, M):
    L = "L1B_"
    for t in range(5):
        b = V_VACC + 8 * t
        A(f"v_cvt_pk_bf16_f32 v{b+3}, v{b+2}, v{b+3}")
        A(f"v_cvt_pk_bf16_f32 v{b+2}, v{b}, v{b+1}")
        A(f"v_cvt_pk_bf16_f32 v{b+4}, v{b+4}, v{b+5}")
        A(f"v_cvt_pk_bf16_f32 v{b+5}, v{b+6}, v{b+7}")
    for rt in range(2):
        b = V_KACC + 20 * rt
        for k in range(10):
            A(f"v_cvt_pk_bf16_f32 v{b+k}, v{b+2*k}, v{b+2*k+1}")
    A(f"v_lshlrev_b32 v2, 3, v{V_LANE}")
    A(f"s_cmp_eq_u32 s{S_WV}, 3"); A(f"s_cbranch_scc1 {L}hg")
    A(f"s_mul_i32 s{S_T0}, s{S_WV}, 5120"); A(f"s_add_u32 s{S_T0}, s{S_T0}, {L_HALO}")
    A(f"v_add_u32 v3, s{S_T0}, v2")
    for q in range(5):
        A(f"ds_write_b64 v3, {vr(V_KACC + 20 + 2*q, 2)} offset:{512*q}")
    for q in range(5):
        A(f"ds_write_b64 v3, {vr(V_VACC + 8*q + 4, 2)} offset:{512*(5+q)}")
    A(f"s_branch {L}hd")
    A(f"{L}hg:")
    A(f"s_lshl_b32 s{S_T0}, s{S_RB}, 3"); A(f"s_add_u32 s{S_T0}, s{S_T0}, s{S_HG}"); A(f"s_mul_i32 s{S_T0}, s{S_T0}, 5120")
    A(f"s_add_u32 s{S_T0}, s{S_T0}, {WS_HALO}")
    for q in range(5):
        A(f"buffer_store_dwordx2 {vr(V_KACC + 20 + 2*q, 2)}, v2, {WSD}, s{S_T0} offen offset:{512*q} sc1")
    A(f"s_add_u32 s{S_T1}, s{S_T0}, 2560")
    for q in range(5):
        A(f"buffer_store_dwordx2 {vr(V_VACC + 8*q + 4, 2)}, v2, {WSD}, s{S_T1} offen offset:{512*q} sc1")
    A(f"{L}hd:")
    vm.halo_marker = len(vm.ops)

def k1_B_end(A, vm, M, P2):
    L = "L1B_"
    KPREV = V_KACC + 10
    BIAS = V_M + 8
    ONES = V_M + 12
    MK = V_M + 16
    set_mask(A, SM_PAR, lanemask(lambda l: l & 1))
    set_mask(A, SM_C0, lanemask(lambda l: 4 * (l >> 4) + (l & 1) <= (l & 15)))
    set_mask(A, SM_C1, lanemask(lambda l: 4 * (l >> 4) + (l & 1) + 2 <= (l & 15)))
    for h, s in ((1, SM_GE1), (2, SM_GE2), (3, SM_GE3)):
        set_mask(A, s, lanemask(lambda l: (l >> 4) >= h))
    GE = {1: SM_GE1, 2: SM_GE2, 3: SM_GE3}
    A("s_barrier")
    A("v_mov_b32 v2, 0xffff"); A("v_mov_b32 v3, 0xffff0000")
    A(f"v_cndmask_b32 v2, v2, v3, {sm(SM_PAR)}")
    A(f"v_cndmask_b32 v{MK}, v2, 0, {sm(SM_C0)}")
    A(f"v_cndmask_b32 v{MK+1}, 0, v2, {sm(SM_C0)}")
    A(f"v_cndmask_b32 v{MK+2}, v2, 0, {sm(SM_C1)}")
    A(f"v_cndmask_b32 v{MK+3}, 0, v2, {sm(SM_C1)}")
    for k in range(4): A(f"v_mov_b32 v{ONES+k}, 0x3f803f80")
    for k in range(4): A(f"v_mov_b32 v{BIAS+k}, 0")
    for rt in range(2):
        b = V_QACC + 20 * rt
        for k in range(10):
            A(f"v_cvt_pk_bf16_f32 v{b+k}, v{b+2*k}, v{b+2*k+1}")
    A(f"v_lshlrev_b32 v2, 3, v{V_LANE}")
    A(f"s_cmp_eq_u32 s{S_WV}, 0"); A(f"s_cbranch_scc1 {L}pg")
    A(f"s_mul_i32 s{S_T0}, s{S_WV}, 5120"); A(f"s_add_u32 s{S_T0}, s{S_T0}, {L_HALO - 5120}")
    A(f"v_add_u32 v3, s{S_T0}, v2")
    for q in range(5):
        A(f"ds_read_b64 {vr(KPREV + 2*q, 2)}, v3 offset:{512*q}")
    for q in range(5):
        A(f"ds_read_b64 {vr(V_VACC + 8*q, 2)}, v3 offset:{512*(5+q)}")
    A("s_waitcnt lgkmcnt(0)")
    A(f"s_branch {L}pd")
    A(f"{L}pg:")
    A(f"s_cmp_eq_u32 s{S_RB}, 0"); A(f"s_cbranch_scc1 {L}pz")
    poll(A, vm, 'kvp', KV_POLL(), check_flags(A))
    A(f"s_sub_u32 s{S_T3}, s{S_RB}, 1")
    A(f"s_lshl_b32 s{S_T0}, s{S_T3}, 3"); A(f"s_add_u32 s{S_T0}, s{S_T0}, s{S_HG}"); A(f"s_mul_i32 s{S_T0}, s{S_T0}, 5120")
    A(f"s_add_u32 s{S_T0}, s{S_T0}, {WS_HALO}")
    for q in range(5):
        A(f"buffer_load_dwordx2 {vr(KPREV + 2*q, 2)}, v2, {WSD}, s{S_T0} offen offset:{512*q} sc1")
    A(f"s_add_u32 s{S_T1}, s{S_T0}, 2560")
    for q in range(5):
        A(f"buffer_load_dwordx2 {vr(V_VACC + 8*q, 2)}, v2, {WSD}, s{S_T1} offen offset:{512*q} sc1")
    A("s_waitcnt vmcnt(0)")
    A(f"s_branch {L}pd")
    A(f"{L}pz:")
    for q in range(10): A(f"v_mov_b32 v{KPREV+q}, 0")
    for q in range(5):
        A(f"v_mov_b32 v{V_VACC+8*q}, 0"); A(f"v_mov_b32 v{V_VACC+8*q+1}, 0")
    for k in range(4): A(f"v_mov_b32 v{BIAS+k}, 0x{f2u(-1e30):x}")
    A(f"{L}pd:")
    A.flush_hazards()
    gate_check(A, vm)
    for rt in range(2): A(f"v_sub_f32 v{V_G+rt}, 1.0, v{V_G+rt}")
    ts(A, "B_prev_ready")
    SC = (20 ** -0.5) * LOG2E
    A(f"s_mov_b32 s{S_C1}, 0x{f2u(SC):x}")
    f_store_base(A, 1)
    A(f"v_lshlrev_b32 v9, 3, v{V_LANE}")
    P2.setup_w()
    A.filler = P2.wfill
    T = V_WF
    QM = T; SP = T + 16; SCU = T + 32; X0 = T + 48; X1 = T + 52; MX = T + 56; PP = T + 60
    for rt in range(2):
        Q = V_QACC + 20 * rt
        KC = V_KACC + 20 * rt
        KP = KPREV if rt == 0 else V_KACC
        for h in range(4):
            for k in range(2):
                src = Q + 2 * h + k
                if h == 0: A(f"v_mov_b32 v{QM+4*h+k}, v{src}")
                else:      A(f"v_cndmask_b32 v{QM+4*h+k}, 0, v{src}, {sm(GE[h])}")
            for k in range(2):
                src = Q + 2 * (h + 1) + k
                if h == 3: A(f"v_mov_b32 v{QM+4*h+2+k}, v{src}")
                else:      A(f"v_cndmask_b32 v{QM+4*h+2+k}, v{src}, 0, {sm(GE[h+1])}")
        for h in range(4):
            Cb = vr(BIAS, 4) if rt == 0 else "0"
            A(f"v_mfma_f32_16x16x32_bf16 {vr(SP+4*h,4)}, {vr(KP+2*h,4)}, {vr(QM+4*h,4)}, {Cb}")
            A(f"v_mfma_f32_16x16x32_bf16 {vr(SCU+4*h,4)}, {vr(KC+2*h,4)}, {vr(QM+4*h,4)}, 0")
        for h in range(4):
            p, c = SP + 4 * h, SCU + 4 * h
            A(f"v_cndmask_b32 v{p}, v{p}, v{p+1}, {sm(SM_PAR)}")
            A(f"v_cndmask_b32 v{c}, v{c}, v{c+1}, {sm(SM_PAR)}")
            A(f"v_cndmask_b32 v{p+2}, v{p+2}, v{p+3}, {sm(SM_PAR)}")
            A(f"v_cndmask_b32 v{c+2}, v{c+2}, v{c+3}, {sm(SM_PAR)}")
            A(f"v_cndmask_b32 v{X0+h}, v{p}, v{c}, {sm(SM_C0)}")
            A(f"v_cndmask_b32 v{X1+h}, v{p+2}, v{c+2}, {sm(SM_C1)}")
            A(f"v_max_f32 v{MX+h}, v{X0+h}, v{X1+h}")
        a0, a1, a2, a3 = MX, MX + 1, MX + 2, MX + 3
        A(f"v_permlane32_swap_b32 v{a0}, v{a1}")
        A(f"v_permlane32_swap_b32 v{a2}, v{a3}")
        A(f"v_max_f32 v{a0}, v{a0}, v{a1}")
        A(f"v_max_f32 v{a2}, v{a2}, v{a3}")
        A(f"v_permlane16_swap_b32 v{a0}, v{a2}")
        A(f"v_max_f32 v{a0}, v{a0}, v{a2}")
        A(f"v_mul_f32 v{a0}, s{S_C1}, v{a0}")
        A(f"v_mov_b32 v{a2}, v{a0}")
        A(f"v_permlane16_swap_b32 v{a0}, v{a2}")
        A(f"v_mov_b32 v{a1}, v{a0}")
        A(f"v_mov_b32 v{a3}, v{a2}")
        A(f"v_permlane32_swap_b32 v{a0}, v{a1}")
        A(f"v_permlane32_swap_b32 v{a2}, v{a3}")
        for h in range(4):
            A(f"v_fma_f32 v{X0+h}, v{X0+h}, s{S_C1}, -v{MX+h}")
            A(f"v_fma_f32 v{X1+h}, v{X1+h}, s{S_C1}, -v{MX+h}")
        for h in range(4):
            A(f"v_exp_f32 v{X0+h}, v{X0+h}")
            A(f"v_exp_f32 v{X1+h}, v{X1+h}")
        for h in range(4):
            A(f"v_cvt_pk_bf16_f32 v{X0+h}, v{X0+h}, v{X0+h}")
            A(f"v_cvt_pk_bf16_f32 v{X1+h}, v{X1+h}, v{X1+h}")
        for h in range(4):
            p = PP + 4 * h
            A(f"v_and_b32 v{p}, v{X0+h}, v{MK}")
            A(f"v_and_b32 v{p+1}, v{X1+h}, v{MK+2}")
            A(f"v_and_b32 v{p+2}, v{X0+h}, v{MK+1}")
            A(f"v_and_b32 v{p+3}, v{X1+h}, v{MK+3}")
        for h in range(4):
            vo = 0 if rt == 0 else 2
            A(f"v_mfma_f32_16x16x32_bf16 {vr(SCU+4*h,4)}, {vr(ONES,4)}, {vr(PP+4*h,4)}, 0")
            A(f"v_mfma_f32_16x16x32_bf16 {vr(QM+4*h,4)}, {vr(V_VACC+8*h+vo,4)}, {vr(PP+4*h,4)}, 0")
            A(f"v_mfma_f32_16x16x32_bf16 {vr(SP+4*h,4)}, {vr(V_VACC+8*(h+1)+vo,4)}, {vr(PP+4*h,4)}, 0")
        for h in range(4):
            A(f"v_rcp_f32 v{MX+h}, v{SCU+4*h}")
        for h in range(4):
            A(f"v_mul_f32 v{MX+h}, v{MX+h}, v{V_G+rt}")
        for t in range(1, 4):
            A(f"v_cndmask_b32 v{X0+t}, v{MX+t-1}, v{MX+t}, {sm(GE[t])}")
        for t in range(5):
            if t == 0:   src = [QM + j for j in range(4)]; r = MX
            elif t == 4: src = [SP + 12 + j for j in range(4)]; r = MX + 3
            else:
                for j in range(4):
                    A(f"v_cndmask_b32 v{QM+4*t+j}, v{SP+4*(t-1)+j}, v{QM+4*t+j}, {sm(GE[t])}")
                src = [QM + 4 * t + j for j in range(4)]; r = X0 + t
            for j in range(4):
                A(f"v_mul_f32 v{src[j]}, v{src[j]}, v{r}")
            o = PP + 2 * t
            A(f"v_cvt_pk_bf16_f32 v{o}, v{src[0]}, v{src[1]}")
            A(f"v_cvt_pk_bf16_f32 v{o+1}, v{src[2]}, v{src[3]}")
        f_stores(A, vm, PP, rt, 9)
        A("s_nop 1")
    A.filler = None
    ts(A, "o_stored")

class Phase2:
    V_ACC = 32
    V_OB = 112
    A_WB = 0
    A_WA = 100
    A_OA = 200
    V_OA2 = 192
    def __init__(self, A, vm):
        self.A = A; self.vm = vm
        self.wlist = [(b, s, ct) for b in (0, 1) for s in range(5) for ct in range(5)]
        self.cnt = 0
    def wreg(self, b, s, ct): return ar((self.A_WB if b == 0 else self.A_WA) + 4 * (5 * s + ct), 4)
    def oa_reg(self, p, s, n=4, off=0):
        k = 5 * p + s
        return ar(self.A_OA + 4 * k + off, n) if k < 14 else vr(self.V_OA2 + 4 * (k - 14) + off, n)
    def ob_reg(self, p, s, n=4, off=0): return vr(self.V_OB + 4 * (5 * p + s) + off, n)
    def setup_w(self):
        A = self.A
        A(f"s_mul_i32 s{S_WPA}, s{S_CG}, 102400"); A(f"s_mul_i32 s{S_T1}, s{S_WV}, 25600"); A(f"s_add_u32 s{S_WPA}, s{S_WPA}, s{S_T1}")
        A(f"s_add_u32 s{S_WPA}, s{S_WPA}, {WS_WP}")
        A(f"s_add_u32 s{S_WPB}, s{S_WPA}, 819200")
        A(f"v_add_u32 v{V_M+7}, 4096, v{V_P2}")
    def wload(self):
        A = self.A
        if not self.wlist: return
        b, s, ct = self.wlist.pop(0)
        f = A.filler; A.filler = None
        base = S_WPB if b == 0 else S_WPA
        if ct == 0:
            A(f"s_add_u32 s{S_SO+1}, s{base}, {5120*s}")
        if ct < 4: A(f"buffer_load_dwordx4 {self.wreg(b,s,ct)}, v{V_P2}, {WSD}, s{S_SO+1} offen offset:{1024*ct} sc1")
        else:      A(f"buffer_load_dwordx4 {self.wreg(b,s,ct)}, v{V_M+7}, {WSD}, s{S_SO+1} offen sc1")
        self.vm.issue(f"w{b}_{s}")
        A.filler = f
    def wfill(self):
        self.cnt += 1
        if self.cnt % WFILL == 0: self.wload()
    def run(self):
        A, vm = self.A, self.vm
        A.filler = None
        while self.wlist: self.wload()
        A(f"s_lshl_b32 s90, s{S_RB}, 1"); A(f"s_add_u32 s90, s90, s{S_BR}"); A("s_lshl_b32 s90, s90, 3"); A(f"s_add_u32 s90, s90, s{S_HG}")
        A("s_lshl_b32 s90, s90, 2"); A(f"s_add_u32 s90, s90, s{S_WV}"); A("s_lshl_b32 s90, s90, 7"); A(f"s_add_u32 s90, s90, {WS_FLG + FL_OD}")
        S_RT = 72
        S_OB, S_OA = 76, 80
        for p in range(4):
            A(f"s_add_u32 s{S_RT+p}, s{S_WV}, {p+1}"); A(f"s_and_b32 s{S_RT+p}, s{S_RT+p}, 3")
            A(f"s_lshl_b32 s{S_T0}, s{S_RHO}, 2"); A(f"s_add_u32 s{S_T0}, s{S_T0}, s{S_RT+p}")
            A(f"s_mul_i32 s{S_T0}, s{S_T0}, 20480"); A(f"s_mul_i32 s{S_T1}, s{S_WV}, 5120")
            A(f"s_add_u32 s{S_OA+p}, s{S_T0}, s{S_T1}")
            if WS_F: A(f"s_add_u32 s{S_OA+p}, s{S_OA+p}, {WS_F}")
            A(f"s_add_u32 s{S_OB+p}, s{S_OA+p}, {128*20480}")
        V_L8, V_L8B, V_FA = 4, 5, 6
        A(f"v_lshlrev_b32 v{V_L8}, 3, v{V_LANE}")
        A(f"v_add_u32 v{V_L8B}, 2560, v{V_L8}")
        A(f"v_bfe_u32 v7, v{V_LANE}, 2, 1"); A("v_xor_b32 v7, 1, v7"); A("v_lshlrev_b32 v7, 5, v7")
        A(f"v_bfe_u32 v8, v{V_LANE}, 1, 1"); A("v_lshl_add_u32 v7, v8, 2, v7")
        A(f"v_and_b32 v8, 1, v{V_LANE}"); A("v_add_u32 v7, v8, v7")
        A(f"v_lshlrev_b32 v{V_FA}, 7, v7")
        A(f"s_lshl_b32 s{S_T0}, s{S_WV}, 3"); A(f"s_and_b32 s{S_T1}, s{S_RHO}, 1"); A(f"s_lshl_b32 s{S_T1}, s{S_T1}, 1"); A(f"s_add_u32 s{S_T0}, s{S_T0}, s{S_T1}")
        A(f"s_lshr_b32 s{S_T1}, s{S_RHO}, 1"); A(f"s_lshl_b32 s{S_T1}, s{S_T1}, 6"); A(f"s_add_u32 s{S_T0}, s{S_T0}, s{S_T1}")
        A(f"s_lshl_b32 s{S_T0}, s{S_T0}, 7")
        A(f"s_add_u32 s92, s{S_T0}, {WS_FLG + FL_OD}")
        A(f"v_mov_b32 v{V_NON}, s{S_NON}"); A(f"v_mov_b32 v{V_NON+1}, s{S_NON+1}")
        A("s_waitcnt vmcnt(0)")
        ts(A, "drained")
        flag_store(A, 90)
        PL = f"buffer_load_dwordx2 {vr(V_POLL,2)}, v{V_FA}, {WSD}, s92 offen sc1"
        A(PL); vm.issue('odp')
        mB = lanemask(lambda l: ((l >> 2) & 1) == 0)
        chk = lambda m: check_flags(A, m)
        poll(A, vm, 'odp', PL, chk(mB))
        ts(A, "pollB")
        def oloads(br):
            base = S_OB if br else S_OA
            reg = self.ob_reg if br else self.oa_reg
            order = [(p, s) for s in range(5) for p in range(4)] if br else [(p, s) for p in range(4) for s in range(5)]
            for p, s in order:
                if s < 4:
                    off = (0, 1024, 2560, 3584)[s]
                    A(f"buffer_load_dwordx4 {reg(p,s)}, v{V_P2}, {WSD}, s{base+p} offen offset:{off} sc1"); vm.issue(f"o{br}_{p}_{s}")
                else:
                    A(f"buffer_load_dwordx2 {reg(p,s,2,0)}, v{V_L8}, {WSD}, s{base+p} offen offset:2048 sc1"); vm.issue(f"o{br}_{p}_{s}")
                    A(f"buffer_load_dwordx2 {reg(p,s,2,2)}, v{V_L8B}, {WSD}, s{base+p} offen offset:2048 sc1"); vm.issue(f"o{br}_{p}_{s}")
        oloads(1)
        A(PL); vm.issue('odp2')
        poll(A, vm, 'odp2', PL, chk(lanemask(lambda l: ((l >> 2) & 1) == 1)))
        ts(A, "pollA")
        oloads(0)
        def acc(p, ct): return self.V_ACC + 20*p + 4*ct
        for s in range(5):
            for p in range(4):
                vm.wait(A, f"o1_{p}_{s}")
                for ct in range(5):
                    a = vr(acc(p, ct), 4)
                    A(f"v_mfma_f32_16x16x32_bf16 {a}, {self.wreg(0,s,ct)}, {self.ob_reg(p,s)}, {'0' if s == 0 else a}")
        ts(A, "bpart")
        V_LR, V_ST = 7, 8
        A(f"s_mul_i32 s{S_T0}, s{S_WV}, 15360")
        A(f"v_add_u32 v{V_LR}, s{S_T0}, v{V_P2}")
        A(f"v_and_b32 v{V_ST}, 15, v{V_LANE}"); A(f"v_mul_u32_u24 v{V_ST}, 1280, v{V_ST}")
        A(f"v_lshrrev_b32 v9, 4, v{V_LANE}"); A(f"v_lshl_add_u32 v{V_ST}, v9, 3, v{V_ST}")
        A(f"s_lshl_b32 s{S_T0}, s{S_RHO}, 2"); A(f"s_add_u32 s{S_T0}, s{S_T0}, s{S_WV}"); A(f"s_mul_i32 s93, s{S_T0}, 20480")
        A(f"s_mul_i32 s{S_T0}, s{S_CG}, 160"); A(f"s_add_u32 s93, s93, s{S_T0}")
        for p in range(3):
            A(f"s_mul_i32 s{S_T0}, s{S_RT+p}, 15360"); A(f"s_add_u32 s{S_T0}, s{S_T0}, {p*5120}")
            A(f"v_add_u32 v{10+p}, s{S_T0}, v{V_P2}")
        fill = []
        for p in range(4):
            for s in range(5):
                vm.wait(A, f"o0_{p}_{s}")
                for ct in range(5):
                    a = vr(acc(p, ct), 4)
                    A(f"v_mfma_f32_16x16x32_bf16 {a}, {self.wreg(1,s,ct)}, {self.oa_reg(p,s)}, {a}")
                    if fill and s >= 1: A(fill.pop(0))
            for x in fill: A(x)
            fill = [f"ds_write_b128 v{10+p}, {vr(acc(p, ct), 4)} offset:{1024*ct}" for ct in range(5)] if p < 3 else []
        A("s_waitcnt lgkmcnt(0)")
        ts(A, "apart")
        A("s_barrier")
        RD = self.V_OB
        for sl in range(3):
            for ct in range(5):
                A(f"ds_read_b128 {vr(RD + 20*sl + 4*ct, 4)}, v{V_LR} offset:{(sl*5 + ct)*1024}")
        OUTD = f"s[{SRD_OUT}:{SRD_OUT+3}]"
        for ct in range(5):
            A(f"s_waitcnt lgkmcnt({max(0, 0)})" if ct == 0 else "s_nop 0")
            for sl in range(3):
                for k in (0, 2):
                    x = vr(acc(3, ct) + k, 2)
                    A(f"v_pk_add_f32 {x}, {x}, {vr(RD + 20*sl + 4*ct + k, 2)}")
            a = acc(3, ct)
            A(f"v_cvt_pk_bf16_f32 v{a}, v{a}, v{a+1}")
            A(f"v_cvt_pk_bf16_f32 v{a+1}, v{a+2}, v{a+3}")
            A(f"buffer_store_dwordx2 {vr(a, 2)}, v{V_ST}, {OUTD}, s93 offen offset:{32*ct}")

class Asm3(Asm):
    def __init__(self):
        super().__init__(); self.filler = None
    def I(self, text):
        ins = super().I(text)
        if self.filler and ins.kind in ('valu', 'trans', 'mfma') and not text.startswith('v_cmp') :
            f = self.filler
            f()
        return ins

def kdesc(name, vgpr, accum, lds=0):
    return f""".amdhsa_kernel {name}
  .amdhsa_next_free_vgpr {vgpr}
  .amdhsa_next_free_sgpr 102
  .amdhsa_accum_offset {accum}
  .amdhsa_group_segment_fixed_size 0
  .amdhsa_kernarg_size 80
  .amdhsa_user_sgpr_count 2
  .amdhsa_user_sgpr_kernarg_segment_ptr 1
  .amdhsa_system_sgpr_workgroup_id_x 1
.end_amdhsa_kernel
"""

HEADER = open('cdna_kernels/' + NAME + '.s.ref').read().split('; Override launch')[0]

def main():
    args = [a for a in sys.argv[1:] if not a.startswith('--')]
    out = args[0] if args else 'cdna_kernels/' + NAME + '.s'
    A = Asm3()
    gen_k1(A)
    txt = HEADER
    txt += f"; @launch grid=(256,1,1) block=(256,1,1) lds={K1_LDS}\n"
    txt += '.amdgcn_target "amdgcn-amd-amdhsa--gfx950"\n.text\n'
    txt += A.text()
    txt += '.section .rodata,"a"\n.p2align 6\n'
    txt += kdesc(K1, 512, 256)
    open(out, 'w').write(txt)

if __name__ == '__main__':
    main()
```

```python
import sys, struct
from asmfw import *

NAME = "gated_mix__linear_attn_block__sliding_local_dilated__prompt"
K1 = NAME + "_kernel"

def f2u(x): return struct.unpack('<I', struct.pack('<f', x))[0]

WS_F    = 0
WS_KV   = 0x500000
WS_GATE = 0x510000
WS_FLG  = 0x520000
FL_ED, FL_KVD, FL_HF, FL_OD = 0, 0x8000, 0x18000, 0x20000
WS_HALO = 0x560000
WS_WP   = 0x600000
WS_TS   = 0x800000
WS_SIZE = 0x900000

L_W   = 0
L_X   = 81920
L_KREG = L_X
L_VREG = L_X + 80 * 272
L_HALO = L_X
L_UNIT = 147456
L_KVX  = 155648
K1_LDS = 163840

LOG2E = 1.4426950408889634
EPS = 1e-6
POLL_LIM = 0x20000

def lanemask(fn):
    m = 0
    for l in range(64):
        if fn(l): m |= 1 << l
    return m

TS = '--ts' in sys.argv
def _arg(name, d):
    for a in sys.argv:
        if a.startswith(f'--{name}='): return int(a.split('=')[1])
    return d
PRO_N = _arg('pron', 18); Q_EARLY = _arg('qe', 9); N_EARLY = _arg('ne', 1); Q0 = _arg('q0', 4); Q1 = _arg('q1', 5); PH_OFF = _arg('phoff', 1)
WFILL = _arg('wfill', 6)
class TSt:
    n = 0
    names = []
def ts(A, name, vreg=255, same=False):
    if not TS: return
    A("s_memtime s[100:101]")
    A("s_waitcnt lgkmcnt(0)")
    if same:
        A(f"v_writelane_b32 v{vreg}, s100, {TSt.names.index(name)}")
        return
    A(f"v_writelane_b32 v{vreg}, s100, {TSt.n}")
    TSt.names.append(name); TSt.n += 1
def ts_reset(tag):
    if TS and TSt.names: print("TSNAMES", tag, TSt.names)
    TSt.n = 0; TSt.names = []
def ts_store(A, srd_, vreg=255):
    if not TS: return
    A(f"s_lshl_b32 s100, s2, 2"); A(f"s_add_u32 s100, s100, s6"); A("s_lshl_b32 s100, s100, 8")
    A(f"s_add_u32 s100, s100, {WS_TS}")
    A("v_mbcnt_lo_u32_b32 v1, -1, 0"); A("v_mbcnt_hi_u32_b32 v1, -1, v1"); A("v_lshlrev_b32 v1, 2, v1")
    A(f"buffer_store_dword v{vreg}, v1, s[{srd_}:{srd_+3}], s100 offen")

class VM:
    def __init__(self): self.ops = []
    def issue(self, tag): self.ops.append(tag)
    def idx(self, tag): return max(i for i, t in enumerate(self.ops) if t == tag)
    def n_after(self, *tags):
        n = 63
        for tag in tags:
            assert tag in self.ops, tag
            n = min(n, len(self.ops) - 1 - self.idx(tag))
        return n
    def wait(self, A, *tags, lgkm=False):
        n = self.n_after(*tags)
        A(f"s_waitcnt vmcnt({n})" + (" lgkmcnt(0)" if lgkm else ""))

def set_mask(A, s, m):
    A(f"s_mov_b32 s{s}, 0x{m & 0xffffffff:x}")
    A(f"s_mov_b32 s{s+1}, 0x{(m >> 32) & 0xffffffff:x}")
def set_exec(A, fn):
    m = lanemask(fn)
    A(f"s_mov_b32 exec_lo, 0x{m & 0xffffffff:x}"); A(f"s_mov_b32 exec_hi, 0x{m >> 32:x}")

def srd(A, s, plo, phi, size):
    A(f"s_mov_b32 s{s}, s{plo}")
    A(f"s_mov_b32 s{s+1}, s{phi}")
    A(f"s_mov_b32 s{s+2}, {size}")
    A(f"s_mov_b32 s{s+3}, 0x20000")

S_BR, S_RB, S_HG, S_WV, S_ROT = 3, 4, 5, 6, 7
S_T0, S_T1, S_T2, S_T3 = 8, 9, 10, 11
S_GROW, S_PC = 12, 13
S_RHO, S_CG = 14, 15
SRD_W, SRD_X, SRD_WS, SRD_DBG, SRD_WO, SRD_OUT, SRD_GW = 36, 40, 44, 48, 52, 56, 60
S_KW, S_KX, S_B1, S_B2, S_LW, S_LX, S_SO = 64, 65, 66, 67, 68, 69, 70
SM_PAR, SM_C0, SM_C1, SM_GE1, SM_GE2, SM_GE3 = 72, 74, 76, 78, 80, 82
S_C1 = 84
S_U0 = 88; S_U1 = 89
S_WPB, S_WPA = 86, 87
S_NON = 16
V_WOFF = 10
V_XOFF = 15
V_WRD, V_WRD2, V_XRD0, V_XRD1 = 19, 20, 21, 22
V_LANE = 23
V_INIT = 24
V_G = 28
V_P2 = 30
V_POLL = 252
V_NON = 250
V_KACC, V_VACC, V_QACC = 32, 72, 112
V_WF = 152
V_M = 232
WSD = f"s[{SRD_WS}:{SRD_WS+3}]"
DBGD = f"s[{SRD_DBG}:{SRD_DBG+3}]"
sm = lambda s: f"s[{s}:{s+1}]"

class Lbl:
    n = 0
def newlbl(p):
    Lbl.n += 1
    return f"L{p}{Lbl.n}"

def poll(A, vm, tag, load, check, pre_wait=True):
    lo, ok = newlbl("pl"), newlbl("pk")
    if pre_wait: vm.wait(A, tag)
    A(f"s_mov_b32 s{S_PC}, 0")
    A(f"{lo}:")
    check()
    A(f"s_cbranch_scc1 {ok}")
    A(f"s_add_u32 s{S_PC}, s{S_PC}, 1")
    A(f"s_cmp_ge_u32 s{S_PC}, {POLL_LIM}")
    A(f"s_cbranch_scc1 {ok}")
    A("s_sleep 1")
    for l in (load if isinstance(load, list) else [load]): A(l)
    A("s_waitcnt vmcnt(0)")
    A(f"s_branch {lo}")
    A(f"{ok}:")
    A.flush_hazards()

def k1_main(A, vm, br):
    isA = br == 'A'
    def kacc(rt, t): return (V_KACC + 8 * t + 4 * rt) if isA else (V_KACC + 20 * rt + 4 * t)
    def vacc(rt, t): return V_VACC + 8 * t + 4 * rt
    def qacc(rt, t): return V_QACC + 20 * rt + 4 * t
    def xfrag(P, rt): return ar((2 * P + rt) * 4, 4)
    def wf(hf, c): return V_WF + 40 * hf + 4 * c

    def dma_slot(sig):
        out = []
        buf = sig % 4
        if sig < 10:
            out.append(f"s_add_u32 s{S_SO}, s{S_KW}, s{S_B1}")
            out.append(f"s_add_u32 m0, s{S_LW}, {buf * 20480}")
            for i in range(4):
                out.append((f"buffer_load_dwordx4 v{V_WOFF+i}, s[{SRD_W}:{SRD_W+3}], s{S_SO} offen offset:{1024*i} lds", f"s{sig}"))
            out.append(f"s_add_u32 m0, s{S_LW}, {buf * 20480 + 4096}")
            out.append((f"buffer_load_dwordx4 v{V_WOFF+4}, s[{SRD_W}:{SRD_W+3}], s{S_SO} offen lds", f"s{sig}"))
            out.append(f"s_add_u32 m0, s{S_LX}, {buf * 16384}")
            for i in range(4):
                out.append((f"buffer_load_dwordx4 v{V_XOFF+i}, s[{SRD_X}:{SRD_X+3}], s{S_KX} offen offset:{1024*i} lds", f"s{sig}"))
            out.append(f"s_add_u32 s{S_KW}, s{S_KW}, 245760")
            out.append(f"s_cmp_eq_u32 s{S_KW}, 2457600")
            out.append(f"s_cselect_b32 s{S_KW}, 0, s{S_KW}")
            out.append(f"s_add_u32 s{S_KX}, s{S_KX}, 128")
            out.append(f"s_cmp_eq_u32 s{S_KX}, 1280")
            out.append(f"s_cselect_b32 s{S_KX}, 0, s{S_KX}")
        else:
            out.append(f"s_add_u32 s{S_SO}, s{S_KW}, s{S_B2}")
            out.append(f"s_add_u32 m0, s{S_LW}, {buf * 20480}")
            for i in range(4):
                out.append((f"buffer_load_dwordx4 v{V_WOFF+i}, s[{SRD_W}:{SRD_W+3}], s{S_SO} offen offset:{1024*i} lds", f"s{sig}"))
            out.append(f"s_add_u32 m0, s{S_LW}, {buf * 20480 + 4096}")
            out.append((f"buffer_load_dwordx4 v{V_WOFF+4}, s[{SRD_W}:{SRD_W+3}], s{S_SO} offen lds", f"s{sig}"))
            out.append(f"s_add_u32 s{S_KW}, s{S_KW}, 491520")
            out.append(f"s_cmp_ge_u32 s{S_KW}, 2457600")
            out.append(f"s_cselect_b32 s{S_T0}, 2457600, 0")
            out.append(f"s_sub_u32 s{S_KW}, s{S_KW}, s{S_T0}")
        if sig == 9:
            out.append(f"s_lshr_b32 s{S_T0}, s{S_WV}, 1")
            out.append(f"s_mul_i32 s{S_T0}, s{S_T0}, 245760")
            out.append(f"s_add_u32 s{S_KW}, s{S_KW}, s{S_T0}")
            out.append(f"s_cmp_ge_u32 s{S_KW}, 2457600")
            out.append(f"s_cselect_b32 s{S_T0}, 2457600, 0")
            out.append(f"s_sub_u32 s{S_KW}, s{S_KW}, s{S_T0}")
        return out

    def emit_list(lst):
        for x in lst:
            if isinstance(x, tuple):
                A(x[0]); vm.issue(x[1])
            else:
                A(x)

    def reads(sig, hf):
        out = []
        buf = sig % 4
        vb = V_WRD if buf < 2 else V_WRD2
        bo = (buf % 2) * 20480
        if sig < 10:
            P = 2 * sig + hf
            for rt in range(2):
                out.append(f"ds_read_b128 {xfrag(P, rt)}, v{V_XRD0 + hf} offset:{buf * 16384 + rt * 2048}")
        for c in range(10):
            img = 2 * hf + c // 5
            t = c % 5
            for h in range(2):
                out.append(f"ds_read_b64_tr_b16 {vr(wf(hf, c) + 2 * h, 2)}, v{vb} offset:{bo + img * 5120 + h * 1280 + 32 * t}")
        return out

    def mfmas(sig, hf, rt_major=False):
        out = []
        order = [(c, rt) for c in range(10) for rt in range(2)]
        if rt_major: order = [(c, rt) for rt in range(2) for c in range(10)]
        for c, rt in order:
            t = c % 5
            W = vr(wf(hf, c), 4)
            if sig < 10:
                P = 2 * sig + hf
                X = xfrag(P, rt)
                first = (P == 0)
                if c < 5:
                    acc = vr(kacc(rt, t), 4)
                    C = acc if not first else (vr(V_INIT, 4) if isA else "0")
                    if isA: out.append(f"v_mfma_f32_16x16x32_bf16 {acc}, {X}, {W}, {C}")
                    else:   out.append(f"v_mfma_f32_16x16x32_bf16 {acc}, {W}, {X}, {C}")
                else:
                    acc = vr(vacc(rt, t), 4)
                    C = acc if not first else "0"
                    out.append(f"v_mfma_f32_16x16x32_bf16 {acc}, {X}, {W}, {C}")
            else:
                P = 4 * (sig - 10) + 2 * hf + c // 5
                X = xfrag(P, rt)
                acc = vr(qacc(rt, t), 4)
                first = (P == 0)
                C = acc if not first else (vr(V_INIT, 4) if isA else "0")
                out.append(f"v_mfma_f32_16x16x32_bf16 {acc}, {W}, {X}, {C}")
        return out
    return dict(dma_slot=dma_slot, emit_list=emit_list, reads=reads, mfmas=mfmas,
                kacc=kacc, vacc=vacc, qacc=qacc, xfrag=xfrag)

def gen_k1(A):
    A(f".globl {K1}\n.p2align 8\n.type {K1},@function\n{K1}:")
    A("s_cmp_ge_u32 s2, 256")
    A("s_cbranch_scc1 L1_end")
    ts(A, "start")
    A("s_load_dwordx16 s[16:31], s[0:1], 0")
    A("s_load_dwordx4 s[32:35], s[0:1], 64")
    A(f"s_and_b32 s{S_BR}, s2, 1")
    A(f"s_lshr_b32 s{S_T0}, s2, 1"); A(f"s_and_b32 s{S_T0}, s{S_T0}, 1")
    A(f"s_lshr_b32 s{S_T1}, s2, 2"); A(f"s_and_b32 s{S_T1}, s{S_T1}, 1")
    A(f"s_lshr_b32 s{S_T2}, s2, 3")
    A(f"s_lshl_b32 s{S_RHO}, s{S_T1}, 1"); A(f"s_add_u32 s{S_RHO}, s{S_RHO}, s{S_BR}"); A(f"s_lshl_b32 s{S_RHO}, s{S_RHO}, 2")
    A(f"s_lshl_b32 s{S_T3}, s{S_T0}, 4"); A(f"s_add_u32 s{S_RHO}, s{S_RHO}, s{S_T3}")
    A(f"s_and_b32 s{S_T3}, s{S_T2}, 3"); A(f"s_add_u32 s{S_RHO}, s{S_RHO}, s{S_T3}")
    A(f"s_lshr_b32 s{S_CG}, s{S_T2}, 2")
    A(f"s_and_b32 s{S_T3}, s{S_T2}, 7")
    A(f"s_lshl_b32 s{S_RB}, s{S_T0}, 3"); A(f"s_add_u32 s{S_RB}, s{S_RB}, s{S_T3}")
    A(f"s_lshr_b32 s{S_T2}, s{S_T2}, 3")
    A(f"s_lshl_b32 s{S_HG}, s{S_T1}, 2"); A(f"s_add_u32 s{S_HG}, s{S_HG}, s{S_T2}")
    ROTM = _arg('rot', 1)
    def rotf(r, h):
        if ROTM == 0: return 0
        if ROTM == 1: return (r + (5 * h) // 2) % 10
        if ROTM == 2: return 5 * (r & 1)
        if ROTM == 3: return r
        if ROTM == 4: return (20 - r - h) % 10
        if ROTM == 5: return (20 - 2 * r - 2 * h) % 10
        if ROTM == 6: return (5 * (h & 1) + 2 * (r & 1)) % 10
        if ROTM == 7: return (r // 2 + 5 * (h & 1)) % 10
        if ROTM == 8: return (r + h) % 10
        if ROTM == 9: return (3 * r + (5 * h) // 2) % 10
    tab = 0
    for j in range(32): tab |= rotf(j & 7, j >> 3) << (4 * j)
    w32 = [(tab >> (32 * i)) & 0xffffffff for i in range(4)]
    A(f"s_lshr_b32 s{S_T2}, s2, 3")
    A(f"s_lshr_b32 s{S_T0}, s{S_T2}, 3")
    A(f"s_mov_b32 s{S_ROT}, 0x{w32[0]:x}")
    for i in range(1, 4):
        A(f"s_cmp_eq_u32 s{S_T0}, {i}"); A(f"s_cselect_b32 s{S_ROT}, 0x{w32[i]:x}, s{S_ROT}")
    A(f"s_lshl_b32 s{S_T3}, s{S_T3}, 2"); A(f"s_lshr_b32 s{S_ROT}, s{S_ROT}, s{S_T3}"); A(f"s_and_b32 s{S_ROT}, s{S_ROT}, 15")
    A(f"v_lshrrev_b32 v1, 6, v0")
    A(f"v_and_b32 v{V_LANE}, 63, v0")
    A(f"v_readfirstlane_b32 s{S_WV}, v1")
    for i in range(5):
        A(f"v_add_u32 v2, {64*i}, v{V_LANE}")
        A("v_mul_u32_u24 v3, 6554, v2"); A("v_lshrrev_b32 v3, 16, v3")
        A("v_mul_u32_u24 v4, 10, v3"); A("v_sub_u32 v4, v2, v4")
        A("v_and_b32 v5, 0x13, v3"); A("v_bfe_u32 v6, v3, 2, 1"); A("v_lshl_or_b32 v5, v6, 3, v5")
        A("v_bfe_u32 v6, v3, 3, 1"); A("v_lshl_or_b32 v5, v6, 2, v5")
        A("v_mul_u32_u24 v5, 3840, v5")
        A(f"v_lshl_add_u32 v{V_WOFF+i}, v4, 4, v5")
        if 0 < i < 4: A(f"v_subrev_u32 v{V_WOFF+i}, {1024*i}, v{V_WOFF+i}")
    A(f"s_lshl_b32 s{S_T0}, s{S_RB}, 7"); A(f"s_lshl_b32 s{S_T1}, s{S_WV}, 5"); A(f"s_add_u32 s{S_T0}, s{S_T0}, s{S_T1}")
    A(f"v_lshrrev_b32 v2, 3, v{V_LANE}")
    A(f"v_add_u32 v2, s{S_T0}, v2")
    A("v_mul_u32_u24 v2, 1280, v2")
    A(f"v_and_b32 v3, 7, v{V_LANE}"); A(f"v_lshrrev_b32 v4, 4, v{V_LANE}"); A("v_xor_b32 v3, v3, v4")
    A("v_xor_b32 v4, 4, v3")
    for i in range(4):
        A(f"v_lshl_add_u32 v{V_XOFF+i}, v{3 + (i & 1)}, 4, v2")
        if i: A(f"v_add_u32 v{V_XOFF+i}, {i * (10240 - 1024)}, v{V_XOFF+i}")
    A(f"v_lshrrev_b32 v2, 4, v{V_LANE}")
    A(f"v_bfe_u32 v3, v{V_LANE}, 2, 2")
    A(f"v_and_b32 v4, 3, v{V_LANE}")
    A("v_lshrrev_b32 v5, 1, v2"); A("v_lshl_add_u32 v5, v5, 4, v3")
    A("v_and_b32 v6, 1, v2"); A("v_lshl_add_u32 v5, v6, 2, v5")
    A("v_mul_u32_u24 v5, 160, v5")
    A(f"v_lshl_add_u32 v{V_WRD}, v4, 3, v5")
    A(f"v_add_u32 v{V_WRD2}, 40960, v{V_WRD}")
    A(f"v_and_b32 v3, 15, v{V_LANE}")
    A("v_bfe_u32 v4, v3, 1, 3"); A("v_xor_b32 v4, v4, v2")
    A("v_lshlrev_b32 v4, 4, v4"); A("v_lshl_add_u32 v4, v3, 7, v4")
    A(f"s_lshl_b32 s{S_T1}, s{S_WV}, 12"); A(f"s_add_u32 s{S_LX}, s{S_T1}, {L_X}")
    A(f"v_add_u32 v{V_XRD0}, s{S_LX}, v4")
    A(f"v_xor_b32 v{V_XRD1}, 64, v{V_XRD0}")
    A(f"s_mul_i32 s{S_LW}, s{S_WV}, 5120")
    A(f"v_lshlrev_b32 v{V_P2}, 4, v{V_LANE}")
    A(f"s_mul_i32 s{S_KW}, s{S_ROT}, 245760")
    A(f"s_lshl_b32 s{S_KX}, s{S_ROT}, 7")
    A(f"s_mul_i32 s{S_T0}, s{S_HG}, 160")
    A(f"s_lshr_b32 s{S_T1}, s{S_WV}, 1"); A(f"s_mul_i32 s{S_T1}, s{S_T1}, 122880")
    A(f"s_and_b32 s{S_T2}, s{S_WV}, 1"); A(f"s_mul_i32 s{S_T3}, s{S_T2}, 1280")
    A(f"s_add_u32 s{S_B1}, s{S_T0}, s{S_T1}"); A(f"s_add_u32 s{S_B1}, s{S_B1}, s{S_T3}"); A(f"s_add_u32 s{S_B1}, s{S_B1}, 1280")
    A(f"s_mul_i32 s{S_T3}, s{S_T2}, 122880"); A(f"s_add_u32 s{S_B2}, s{S_T0}, s{S_T3}")
    A(f"v_mov_b32 v{V_INIT}, 0x{f2u(1.0 + EPS):x}")
    for i in range(1, 4): A(f"v_mov_b32 v{V_INIT+i}, v{V_INIT}")
    A(f"s_lshl_b32 s{S_T0}, s{S_BR}, 3"); A(f"s_add_u32 s{S_T0}, s{S_T0}, s{S_HG}")
    A(f"s_lshl_b32 s{S_GROW}, s{S_T0}, 3"); A(f"s_lshl_b32 s{S_T1}, s{S_WV}, 1"); A(f"s_add_u32 s{S_GROW}, s{S_GROW}, s{S_T1}")
    A(f"s_lshl_b32 s{S_T1}, s{S_RB}, 7"); A(f"s_add_u32 s{S_GROW}, s{S_GROW}, s{S_T1}")
    A(f"v_and_b32 v7, 31, v{V_LANE}"); A("v_lshlrev_b32 v7, 4, v7")
    A(f"v_lshrrev_b32 v8, 5, v{V_LANE}"); A("v_mul_u32_u24 v8, 1280, v8"); A("v_add_u32 v8, v8, v7")
    A("v_cmp_gt_u32 vcc, 256, v7"); A("v_mov_b32 v9, 0x7000000"); A("v_cndmask_b32 v9, v9, v8, vcc")
    A(f"s_mul_i32 s96, s{S_GROW}, 1280")
    ts(A, "addr_done")
    A("s_waitcnt lgkmcnt(0)")
    ts(A, "karg")
    A(f"s_cmp_eq_u32 s{S_BR}, 0")
    A(f"s_cselect_b32 s{SRD_W}, s18, s24"); A(f"s_cselect_b32 s{SRD_W+1}, s19, s25")
    A(f"s_mov_b32 s{SRD_W+2}, 2457600"); A(f"s_mov_b32 s{SRD_W+3}, 0x20000")
    srd(A, SRD_X, 16, 17, 2621440)
    srd(A, SRD_WS, 34, 35, WS_SIZE)
    srd(A, SRD_DBG, 32, 33, 256)
    srd(A, SRD_GW, 28, 29, 1280)
    srd(A, SRD_OUT, 30, 31, 2621440)
    A("s_cbranch_scc0 L1_B")
    n0 = TSt.n; nm0 = list(TSt.names)
    k1_branch(A, 'A')
    ts_reset("K1A")
    A("L1_B:")
    A.hist = []
    TSt.n = n0; TSt.names = nm0
    k1_branch(A, 'B')
    ts_reset("K1B")
    A("L1_end:")
    A("s_endpgm")

def phi_pack_pairs(A, pairs, tmp, G=4):
    n = len(pairs)
    for g0 in range(0, n, G):
        grp = pairs[g0:g0 + G]
        for k, (s, d) in enumerate(grp):
            t = tmp + 2 * k
            A(f"v_pk_fma_f32 {vr(t,2)}, {vr(s,2)}, s[{S_C1}:{S_C1+1}], {vr(V_M,2)}")
        for k, (s, d) in enumerate(grp):
            t = tmp + 2 * k
            A(f"v_exp_f32_e64 v{t}, v{t} clamp")
            A(f"v_exp_f32_e64 v{t+1}, v{t+1} clamp")
        for k, (s, d) in enumerate(grp):
            t = tmp + 2 * k
            A(f"v_pk_add_f32 {vr(t,2)}, {vr(t,2)}, {vr(V_M+2,2)}")
        for k, (s, d) in enumerate(grp):
            t = tmp + 2 * k
            A(f"v_max_f32 v{t}, v{s}, v{t}")
            A(f"v_max_f32 v{t+1}, v{s+1}, v{t+1}")
        for k, (s, d) in enumerate(grp):
            t = tmp + 2 * k
            A(f"v_cvt_pk_bf16_f32 v{d}, v{t}, v{t+1}")

def unit_params(A):
    A(f"s_cmp_ge_u32 s2, 100"); A(f"s_cselect_b32 s91, 1, 0")
    A(f"s_mul_i32 s{S_T0}, s91, 100"); A(f"s_sub_u32 s{S_T0}, s2, s{S_T0}")
    A(f"s_mul_i32 s92, s{S_T0}, 205"); A(f"s_lshr_b32 s92, s92, 10")
    A(f"s_mul_i32 s{S_T1}, s92, 5"); A(f"s_sub_u32 s93, s{S_T0}, s{S_T1}")
    A(f"s_cmp_ge_u32 s2, 200"); A(f"s_cselect_b32 s94, 0x4000000, 0")

def unit_dma(A, vm):
    VU = V_M + 6
    unit_params(A)
    A(f"s_cmp_eq_u32 s91, 0")
    A(f"s_cselect_b32 s{SRD_WO}, s20, s26"); A(f"s_cselect_b32 s{SRD_WO+1}, s21, s27")
    A(f"s_mov_b32 s{SRD_WO+2}, 819200"); A(f"s_mov_b32 s{SRD_WO+3}, 0x20000")
    A(f"v_lshrrev_b32 v2, 4, v{V_LANE}")
    A(f"v_and_b32 v3, 15, v{V_LANE}")
    A(f"v_lshlrev_b32 v4, 1, v2")
    A(f"v_xor_b32 v3, v3, v4")
    A(f"s_and_b32 s{S_T0}, s{S_WV}, 1")
    A(f"s_lshl_b32 s{S_T0}, s{S_T0}, 3")
    A(f"v_xor_b32 v3, s{S_T0}, v3")
    A(f"v_mul_u32_u24 v2, 1280, v2")
    A(f"v_lshl_add_u32 v{VU}, v3, 4, v2")
    A(f"v_mul_u32_u24 v2, 19, v2")
    A(f"v_add_u32 v{VU+1}, v{VU}, v2")
    A("s_mul_i32 s95, s92, 52"); A("s_lshr_b32 s95, s95, 8")
    A("s_mul_i32 s96, s95, 5"); A("s_sub_u32 s96, s92, s96")
    for h in range(2):
        A(f"s_lshl_b32 s{S_T1}, s95, 1")
        A(f"s_cmp_ge_u32 s96, 2"); A(f"s_cselect_b32 s{S_T2}, 1, 0")
        A(f"s_lshl_b32 s{S_T3}, s{S_T2}, 1"); A(f"s_sub_u32 s{S_T3}, s96, s{S_T3}")
        A(f"s_lshl_b32 s{S_T3}, s{S_T3}, 1"); A(f"s_add_u32 s{S_T3}, s{S_T3}, {h}")
        A(f"s_cmp_eq_u32 s96, 4"); A(f"s_cselect_b32 s{S_T2}, {h}, s{S_T2}"); A(f"s_cselect_b32 s{S_T3}, 4, s{S_T3}")
        A(f"s_add_u32 s{S_T1}, s{S_T1}, s{S_T2}")
        A(f"s_mul_i32 s{S_T1}, s{S_T1}, 80")
        A(f"s_lshl_b32 s97, s{S_WV}, 2")
        A(f"s_lshl_b32 s98, s{S_T3}, 4"); A("s_add_u32 s98, s98, s97")
        A(f"s_mul_i32 s99, s{S_T3}, 20"); A("s_add_u32 s99, s99, s97")
        A(f"s_add_u32 s97, s{S_WV}, 16")
        A(f"s_cmp_eq_u32 s{S_T3}, 4"); A("s_cselect_b32 s99, s97, s99")
        A(f"s_cselect_b32 s97, 1, 0")
        A("s_cmp_eq_u32 s91, 0"); A("s_cselect_b32 s98, s99, s98"); A("s_cselect_b32 s97, s97, 0")
        A(f"s_add_u32 s{S_T1}, s{S_T1}, s98")
        A(f"s_mul_i32 s{S_T1}, s{S_T1}, 1280"); A(f"s_lshl_b32 s{S_T2}, s93, 8"); A(f"s_add_u32 s{S_T1}, s{S_T1}, s{S_T2}")
        A(f"s_add_u32 s{S_T1}, s{S_T1}, s94")
        A("s_cmp_eq_u32 s97, 1"); A("s_cselect_b64 vcc, -1, 0")
        A(f"v_cndmask_b32 v{VU+2}, v{VU}, v{VU+1}, vcc")
        A(f"s_lshl_b32 s{S_T2}, s{S_WV}, 11")
        A(f"s_add_u32 m0, s{S_T2}, {L_UNIT + 1024*h}")
        A(f"buffer_load_dwordx4 v{VU+2}, s[{SRD_WO}:{SRD_WO+3}], s{S_T1} offen lds"); vm.issue('wu')

def unit_store(A, vm):
    R = V_M + 8
    unit_params(A)
    A(f"v_lshrrev_b32 v2, 4, v{V_LANE}")
    A(f"v_bfe_u32 v3, v{V_LANE}, 2, 2")
    A(f"v_and_b32 v4, 3, v{V_LANE}")
    A("v_lshl_add_u32 v5, v2, 3, v3"); A("v_lshlrev_b32 v5, 8, v5")
    A("v_and_b32 v6, 1, v4"); A("v_lshl_add_u32 v5, v6, 3, v5")
    A("v_lshlrev_b32 v6, 1, v3"); A("v_and_b32 v7, 1, v2"); A("v_lshl_or_b32 v6, v7, 3, v6")
    A("v_lshrrev_b32 v7, 1, v4"); A("v_or_b32 v6, v6, v7")
    A(f"s_lshl_b32 s{S_T0}, s{S_WV}, 2")
    A(f"v_xor_b32 v7, s{S_T0}, v6"); A("v_lshl_add_u32 v8, v7, 4, v5")
    A("v_xor_b32 v7, 2, v7"); A("v_lshl_add_u32 v9, v7, 4, v5")
    A(f"v_add_u32 v8, {L_UNIT}, v8"); A(f"v_add_u32 v9, {L_UNIT}, v9")
    for e in range(2):
        for h in range(2):
            A(f"ds_read_b64_tr_b16 {vr(R + 4*e + 2*h, 2)}, v{8+e} offset:{1024*h}")
    for e in range(2):
        A(f"s_lshl_b32 s{S_T0}, s93, 3"); A(f"s_lshl_b32 s{S_T1}, s{S_WV}, 1"); A(f"s_add_u32 s{S_T0}, s{S_T0}, s{S_T1}")
        if e: A(f"s_add_u32 s{S_T0}, s{S_T0}, 1")
        A(f"s_mul_i32 s{S_T1}, s{S_T0}, 52"); A(f"s_lshr_b32 s{S_T1}, s{S_T1}, 8")
        A(f"s_mul_i32 s{S_T2}, s{S_T1}, 5"); A(f"s_sub_u32 s{S_T2}, s{S_T0}, s{S_T2}")
        A(f"s_lshl_b32 s{S_T3}, s91, 3"); A(f"s_add_u32 s{S_T1}, s{S_T1}, s{S_T3}")
        A(f"s_mul_i32 s{S_T1}, s{S_T1}, 20"); A(f"s_add_u32 s{S_T1}, s{S_T1}, s92")
        A(f"s_mul_i32 s{S_T1}, s{S_T1}, 5"); A(f"s_add_u32 s{S_T1}, s{S_T1}, s{S_T2}")
        A(f"s_lshl_b32 s{S_T1}, s{S_T1}, 10"); A(f"s_add_u32 s{S_T1}, s{S_T1}, {WS_WP}")
        A(f"s_add_u32 s{S_T1}, s{S_T1}, s94")
        if e == 0: A("s_waitcnt lgkmcnt(0)")
        A(f"buffer_store_dwordx4 {vr(R + 4*e, 4)}, v{V_P2}, {WSD}, s{S_T1} offen sc1"); vm.issue('wus')

def flag_store(A, saddr):
    A("v_mov_b32 v3, 0")
    A("s_mov_b64 exec, 1")
    A(f"buffer_store_dwordx2 {vr(V_NON,2)}, v3, {WSD}, s{saddr} offen sc1")
    A("s_mov_b64 exec, -1")

def check_flags(A, mask=None):
    def f():
        A(f"v_cmp_eq_u64 vcc, s[{S_NON}:{S_NON+1}], {vr(V_POLL,2)}")
        if mask is None:
            A("s_nop 0")
            A("s_cmp_eq_u64 vcc, -1")
        else:
            set_mask(A, 94, mask)
            A("s_and_b64 vcc, vcc, s[94:95]")
            A("s_cmp_eq_u64 vcc, s[94:95]")
    return f

def wg_id_of(A, vdst, vbr, vrb, vhg, t0, t1):
    A(f"v_lshrrev_b32 v{t0}, 3, v{vrb}"); A(f"v_lshl_add_u32 v{vdst}, v{t0}, 1, v{vbr}")
    A(f"v_lshrrev_b32 v{t0}, 2, v{vhg}"); A(f"v_lshl_add_u32 v{vdst}, v{t0}, 2, v{vdst}")
    A(f"v_and_b32 v{t0}, 3, v{vhg}"); A(f"v_and_b32 v{t1}, 7, v{vrb}"); A(f"v_lshl_add_u32 v{t0}, v{t0}, 3, v{t1}")
    A(f"v_lshl_add_u32 v{vdst}, v{t0}, 3, v{vdst}")

V_EDA = 249
def ed_poll_addr(A):
    l = V_LANE
    A(f"v_cmp_le_u32 vcc, 10, v{l}"); A("v_cndmask_b32 v2, 0, 1, vcc" if False else "v_cndmask_b32_e64 v2, 0, 1, vcc")
    A(f"v_mul_u32_u24 v3, 10, v2"); A(f"v_sub_u32 v3, v{l}, v3")
    A("v_lshrrev_b32 v4, 1, v3"); A(f"s_mul_i32 s{S_T0}, s{S_WV}, 5"); A(f"v_add_u32 v4, s{S_T0}, v4")
    A("v_mul_u32_u24 v4, 5, v4"); A("v_mul_u32_u24 v5, 100, v2"); A("v_add_u32 v4, v4, v5")
    A(f"s_mul_i32 s{S_T0}, s{S_CG}, 80"); A(f"s_lshr_b32 s{S_T1}, s{S_T0}, 7"); A(f"s_add_u32 s{S_T0}, s{S_T0}, 79"); A(f"s_lshr_b32 s{S_T0}, s{S_T0}, 7")
    A("v_and_b32 v3, 1, v3"); A("v_cmp_eq_u32 vcc, 1, v3")
    A(f"v_mov_b32 v5, s{S_T1}"); A(f"v_mov_b32 v6, s{S_T0}"); A("v_cndmask_b32 v5, v5, v6, vcc")
    A("v_add_u32 v4, v4, v5")
    A(f"s_lshl_b32 s{S_T0}, s{S_WV}, 2"); A(f"s_sub_u32 s{S_T0}, s{S_T0}, 20"); A(f"v_add_u32 v2, s{S_T0}, v{l}")
    A("v_and_b32 v2, 15, v2")
    A("v_lshrrev_b32 v3, 3, v2"); A("v_and_b32 v2, 7, v2"); A(f"v_mov_b32 v5, s{S_RB}")
    wg_id_of(A, 6, 3, 5, 2, 7, 8)
    A(f"v_cmp_le_u32 vcc, 20, v{l}"); A("v_cndmask_b32 v4, v4, v6, vcc")
    A(f"v_subrev_u32 v5, 24, v{l}"); A("v_and_b32 v5, 15, v5"); A("v_mov_b32 v3, 0"); A(f"v_mov_b32 v2, s{S_HG}")
    wg_id_of(A, 6, 3, 5, 2, 7, 8)
    A(f"v_cmp_le_u32 vcc, 24, v{l}"); A("v_cndmask_b32 v4, v4, v6, vcc")
    A(f"v_lshlrev_b32 v{V_EDA}, 7, v4")
ED_LD = f"buffer_load_dwordx2 {vr(252,2)}, v{V_EDA}, {WSD}, s71 offen sc1"

def k1_branch(A, br):
    isA = br == 'A'
    vm = VM()
    M = k1_main(A, vm, br)
    emit_list, dma_slot, reads, mfmas = (M[k] for k in ('emit_list', 'dma_slot', 'reads', 'mfmas'))
    L = f"L1{br}_"
    S_TAG[0] = br
    P2 = Phase2(A, vm)
    WQ = _arg('wq', 3)
    def wq(sig, hf):
        if sig < 10: return []
        P2.allow = min(50, 24 + 4 * (2 * (sig - 10) + hf))
        return P2.wgroups(WQ)
    GX, GW = V_QACC, V_QACC + 12
    GWD = f"s[{SRD_GW}:{SRD_GW+3}]"; XD = f"s[{SRD_X}:{SRD_X+3}]"
    def gate_loads():
        for j in range(3):
            A(f"buffer_load_dwordx4 {vr(GX+4*j,4)}, v{8 if j < 2 else 9}, {XD}, s96 offen offset:{512*j}"); vm.issue('gx')
            A(f"buffer_load_dwordx4 {vr(GW+4*j,4)}, v7, {GWD}, 0 offen offset:{512*j}"); vm.issue('gx')
    def gate_compute():
        vm.wait(A, 'gx')
        acc = 2
        for j in range(3):
            for k in range(4):
                C = "0" if (j == 0 and k == 0) else f"v{acc}"
                A(f"v_dot2_f32_bf16 v{acc}, v{GX+4*j+k}, v{GW+4*j+k}, {C}")
        A("s_nop 3")
        for sh in (1, 2, 4, 8):
            A(f"v_add_f32_dpp v{acc}, v{acc}, v{acc} row_shr:{sh} row_mask:0xf bank_mask:0xf bound_ctrl:0")
        A(f"v_add_f32_dpp v{acc}, v{acc}, v{acc} row_bcast:15 row_mask:0xa bank_mask:0xf")
        A(f"v_mul_f32 v{acc}, 0x{f2u(-LOG2E):x}, v{acc}")
        A(f"v_exp_f32 v{acc}, v{acc}")
        A(f"v_add_f32 v{acc}, 1.0, v{acc}")
        A(f"v_rcp_f32 v{acc}, v{acc}")
        A(f"v_lshrrev_b32 v3, 5, v{V_LANE}"); A("v_lshlrev_b32 v3, 2, v3")
        A(f"s_lshl_b32 s{S_T0}, s{S_GROW}, 5"); A(f"s_add_u32 s{S_T0}, s{S_T0}, {WS_GATE}")
        set_exec(A, lambda l: l in (31, 63))
        A(f"buffer_store_dword v{acc}, v3, {WSD}, s{S_T0} offen sc1"); vm.issue('gst')
        A("s_mov_b64 exec, -1")
    stream = []
    for sig in range(15):
        cur = []
        for x in dma_slot(sig):
            cur.append(x)
            if isinstance(x, tuple):
                stream.append((sig, cur)); cur = []
        if cur: stream[-1][1].extend(cur)
    spos = [0]
    def take(n, maxslot):
        out = []
        while n > 0 and spos[0] < len(stream) and stream[spos[0]][0] <= maxslot:
            out.append(stream[spos[0]][1]); spos[0] += 1; n -= 1
        return out
    for gi, g in enumerate(take(PRO_N, 3)):
        emit_list(g)
        if gi in (0, 8): ts(A, f"d{gi}")
    ts(A, "pro_issued")
    if isA:
        A(f"s_lshl_b32 s{S_T0}, s2, 2"); A(f"s_add_u32 s{S_T0}, s{S_T0}, s{S_WV}")
        A(f"s_cmp_lg_u32 s{S_T0}, 0"); A(f"s_cbranch_scc1 {L}nn")
        A("s_memrealtime s[98:99]")
        A("s_waitcnt lgkmcnt(0)")
        A("s_or_b32 s98, s98, 1"); A("s_or_b32 s99, s99, 0x80000000")
        A("v_mov_b32 v2, s98"); A("v_mov_b32 v3, s99"); A("v_mov_b32 v4, 0")
        A("s_mov_b64 exec, 1")
        A(f"buffer_store_dwordx2 v[2:3], v4, {DBGD}, 0 offen sc1")
        A("s_mov_b64 exec, -1")
        A(f"{L}nn:")
        A(f"s_cmp_lg_u32 s{S_WV}, 0"); A(f"s_cbranch_scc1 {L}nz")
        A(f"s_lshl_b32 s{S_T0}, s{S_HG}, 13"); A(f"s_lshl_b32 s{S_T1}, s{S_RB}, 9"); A(f"s_add_u32 s{S_T0}, s{S_T0}, s{S_T1}")
        A(f"s_add_u32 s{S_T0}, s{S_T0}, {WS_KV}")
        A("v_mov_b32 v2, 0"); A("v_mov_b32 v3, 0"); A("v_mov_b32 v4, 0"); A("v_mov_b32 v5, 0")
        A("s_mov_b32 exec_hi, 0")
        A(f"buffer_store_dwordx4 v[2:5], v{V_P2}, {WSD}, s{S_T0} offen sc1")
        A("s_mov_b32 exec_hi, -1")
        A(f"{L}nz:")
        A(f"s_mov_b32 s{S_C1}, 0x{f2u(LOG2E):x}"); A(f"s_mov_b32 s{S_C1+1}, 0x{f2u(LOG2E):x}")
        A(f"v_mov_b32 v{V_M}, 0x{f2u(-(1.0+EPS)*LOG2E):x}"); A(f"v_mov_b32 v{V_M+1}, v{V_M}")
        A(f"v_mov_b32 v{V_M+2}, 0x{f2u(EPS):x}"); A(f"v_mov_b32 v{V_M+3}, v{V_M+2}")
    gate_loads()
    ed_poll_addr(A)
    vm.wait(A, 's0')
    A("s_barrier")
    ts(A, "s0_ready")
    emit_list(reads(0, 0))
    A("s_waitcnt lgkmcnt(0)")

    def phase2(mf, rd, groups, extra=()):
        n = len(mf)
        fill = list(extra) + list(rd)
        pos = {}
        for k, g in enumerate(groups):
            pos.setdefault(min(n - 1, (k * n) // max(1, len(groups)) + PH_OFF), []).append(g)
        fi = 0
        for i, m in enumerate(mf):
            A(m)
            used = 0
            for g in pos.get(i, []):
                emit_list(g); used += 2
            for _ in range(max(1, 3 - used)):
                if fi < len(fill):
                    emit_list([fill[fi]]); fi += 1
        emit_list(fill[fi:])

    def iteration(sig, also_wait=(), after_barrier=None, mid14=None):
        last = (sig == 14)
        q0 = Q_EARLY if sig < N_EARLY else Q0
        q1 = Q_EARLY if sig < N_EARLY else Q1
        phase2(mfmas(sig, 0), reads(sig, 1), take(q0, sig + 3) + wq(sig, 0))
        if not last:
            for g in take(100, sig + 1): emit_list(g)
            vm.wait(A, f's{sig+1}', *also_wait, lgkm=True)
            A("s_barrier")
            if after_barrier: after_barrier()
            phase2(mfmas(sig, 1), reads(sig + 1, 0), take(q1, sig + 4) + wq(sig, 1))
            A("s_waitcnt lgkmcnt(0)")
        else:
            A("s_waitcnt lgkmcnt(0)")
            mid14()
            for m in mfmas(sig, 1, rt_major=True): A(m)

    NON_LD = f"buffer_load_dwordx2 {vr(V_POLL,2)}, v{V_M+4}, {DBGD}, 0 offen sc1"
    for sig in range(10):
        if sig == 2:
            iteration(sig, also_wait=('wu',))
            unit_store(A, vm)
        elif sig == 4:
            def edflag():
                l = newlbl("w0")
                A(f"s_cmp_lg_u32 s{S_WV}, 0"); A(f"s_cbranch_scc1 {l}")
                A("s_lshl_b32 s90, s2, 7"); A(f"s_add_u32 s90, s90, {WS_FLG + FL_ED}")
                flag_store(A, 90)
                A(f"{l}:")
            iteration(sig, also_wait=('wus', 'gst'), after_barrier=edflag)
        else:
            iteration(sig)
        if sig == 0:
            unit_dma(A, vm)
        if sig == 1:
            gate_compute()
            A(f"v_mov_b32 v{V_M+4}, 0")
            A(NON_LD); vm.issue('non')
        if sig == 3:
            def chk():
                A(f"v_readfirstlane_b32 s{S_NON}, v{V_POLL}"); A(f"v_readfirstlane_b32 s{S_NON+1}, v{V_POLL+1}")
                A(f"s_cmp_lg_u32 s{S_NON}, 0"); A(f"s_cselect_b32 s90, s{S_NON+1}, 0"); A("s_cmp_lg_u32 s90, 0")
            poll(A, vm, 'non', NON_LD, chk)
            A(f"v_mov_b32 v{V_NON}, s{S_NON}"); A(f"v_mov_b32 v{V_NON+1}, s{S_NON+1}")
        if sig == 8:
            A(f"s_mov_b32 s71, {WS_FLG + FL_ED}")
            A(ED_LD); vm.issue('edp')
        if sig in (0, 1, 2, 4, 6, 8, 9): ts(A, f"it{sig}")
    poll(A, vm, 'edp', ED_LD, check_flags(A, lanemask(lambda l: l < (40 if isA else 24))))
    ts(A, "ed_ok")
    P2.setup_w()
    if isA:
        P2.allow = 24; P2.every = _arg('wmid', 8); A.filler = P2.wfill
        k1_A_mid(A, vm, M)
        A.filler = None; P2.every = WFILL
    else:   k1_B_mid(A, vm, M)
    ts(A, "mid")
    KVF_IT = _arg('kvfit', 13)
    for sig in range(10, 15):
        ab = None; aw = ()
        if isA and sig == KVF_IT:
            aw = ('kvat',)
            def ab():
                A(f"s_lshl_b32 s91, s{S_HG}, 2"); A(f"s_add_u32 s91, s91, s{S_WV}"); A("s_lshl_b32 s91, s91, 4"); A(f"s_add_u32 s91, s91, s{S_RB}")
                A("s_lshl_b32 s91, s91, 7"); A(f"s_add_u32 s91, s91, {WS_FLG + FL_KVD}")
                flag_store(A, 91); vm.issue('kvf')
        if (not isA) and sig == 12:
            def ab():
                l = newlbl("hf")
                A(f"s_cmp_lg_u32 s{S_WV}, 3"); A(f"s_cbranch_scc1 {l}")
                A(f"s_waitcnt vmcnt({len(vm.ops) - vm.halo_marker})")
                A(f"s_lshl_b32 s92, s{S_HG}, 4"); A(f"s_add_u32 s92, s92, s{S_RB}"); A("s_lshl_b32 s92, s92, 7"); A(f"s_add_u32 s92, s92, {WS_FLG + FL_HF}")
                flag_store(A, 92)
                A(f"{l}:")
        iteration(sig, also_wait=aw, after_barrier=ab, mid14=(lambda: (pre_tail_loads(A, vm, isA), P2.prep())))
        if sig == 11:
            gate_data_loads(A, vm)
        ts(A, f"it{sig}")
    P2.allow = 50
    if isA: k1_A_end(A, vm, M, P2)
    else:   k1_B_end(A, vm, M, P2)
    P2.run()
    ts(A, "end"); ts_store(A, SRD_WS)
    A("s_endpgm")

def gate_data_loads(A, vm):
    A(f"v_and_b32 v2, 15, v{V_LANE}")
    A("v_lshrrev_b32 v3, 1, v2"); A("v_lshlrev_b32 v3, 6, v3"); A("v_and_b32 v2, 1, v2"); A("v_lshl_add_u32 v3, v2, 2, v3")
    A(f"s_lshl_b32 s{S_T0}, s{S_RB}, 6"); A(f"s_lshl_b32 s{S_T1}, s{S_WV}, 4"); A(f"s_add_u32 s{S_T0}, s{S_T0}, s{S_T1}")
    A(f"s_lshl_b32 s{S_T0}, s{S_T0}, 6"); A(f"s_add_u32 s{S_T0}, s{S_T0}, {WS_GATE}")
    for rt in range(2):
        A(f"buffer_load_dword v{V_G+rt}, v3, {WSD}, s{S_T0} offen offset:{512*rt} sc1"); vm.issue('gl')

def pre_tail_loads(A, vm, isA):
    if isA:
        A(f"v_and_b32 v{V_M+5}, 15, v{V_LANE}"); A(f"v_lshlrev_b32 v{V_M+5}, 7, v{V_M+5}")
        A(f"s_lshl_b32 s{S_U0}, s{S_HG}, 2"); A(f"s_add_u32 s{S_U0}, s{S_U0}, s{S_WV}"); A(f"s_lshl_b32 s{S_U0}, s{S_U0}, 11")
        A(f"s_add_u32 s{S_U0}, s{S_U0}, {WS_FLG + FL_KVD}")
    else:
        A(f"s_lshl_b32 s{S_U0}, s{S_HG}, 4"); A(f"s_add_u32 s{S_U0}, s{S_U0}, s{S_RB}"); A(f"s_lshl_b32 s{S_U0}, s{S_U0}, 7")
        A(f"s_add_u32 s{S_U0}, s{S_U0}, {WS_FLG + FL_HF - 128}")
        A(f"v_mov_b32 v{V_M+5}, 0")
    A(KV_POLL()); vm.issue('kvp')
def KV_POLL():
    return f"buffer_load_dwordx2 {vr(V_POLL,2)}, v{V_M+5}, {WSD}, s{S_U0} offen sc1"

def gate_check(A, vm):
    vm.wait(A, 'gl')

def k1_A_mid(A, vm, M):
    L = "L1A_"
    TMP = V_QACC
    for t in range(5):
        b = V_VACC + 8 * t
        for k in range(4):
            A(f"v_cvt_pk_bf16_f32 v{b+k}, v{b+2*k}, v{b+2*k+1}")
    pairs = []
    for t in range(5):
        b = V_KACC + 8 * t
        for k in range(4):
            pairs.append((b + 2 * k, b + k))
    phi_pack_pairs(A, pairs, TMP)
    i_, g_ = 2, 3
    A(f"v_and_b32 v{i_}, 15, v{V_LANE}"); A(f"v_lshrrev_b32 v{g_}, 4, v{V_LANE}")
    A(f"s_lshl_b32 s{S_T0}, s{S_WV}, 6")
    A(f"v_lshl_add_u32 v4, v{g_}, 4, s{S_T0}")
    A(f"v_mul_u32_u24 v5, 272, v{i_}")
    A("v_add_u32 v5, v5, v4")
    A(f"v_add_u32 v6, {L_KREG}, v5")
    for t in range(5):
        A(f"ds_write_b128 v6, {vr(V_KACC + 8*t, 4)} offset:{t * 16 * 272}")
    for t in range(5):
        lo = (16 * t) // 20; hi = (16 * t + 15) // 20
        if lo == hi:
            A(f"v_add_u32 v7, {L_VREG + (16*t + lo) * 272}, v5")
            A(f"ds_write_b128 v7, {vr(V_VACC + 8*t, 4)}")
        else:
            thr = hi * 20 - 16 * t
            A(f"v_cmp_le_u32 vcc, {thr}, v{i_}")
            A(f"v_mov_b32 v7, {L_VREG + (16*t + lo) * 272}")
            A(f"v_mov_b32 v8, {L_VREG + (16*t + hi) * 272}")
            A("v_cndmask_b32 v7, v7, v8, vcc")
            A("v_add_u32 v7, v7, v5")
            A(f"ds_write_b128 v7, {vr(V_VACC + 8*t, 4)}")
    A(f"v_mul_u32_u24 v7, {21*272}, v{i_}")
    A("v_add_u32 v7, v7, v4")
    A(f"v_add_u32 v7, {L_VREG + 20*272}, v7")
    for k in range(4): A(f"v_mov_b32 v{TMP+k}, 0x3f803f80")
    set_exec(A, lambda l: (l & 15) < 4)
    A(f"ds_write_b128 v7, {vr(TMP,4)}")
    A("s_mov_b64 exec, -1")
    A(f"s_mul_i32 s{S_T0}, s{S_WV}, {20*272}"); A(f"s_add_u32 s{S_T0}, s{S_T0}, {L_KREG}")
    A(f"s_mul_i32 s{S_T1}, s{S_WV}, {21*272}"); A(f"s_add_u32 s{S_T1}, s{S_T1}, {L_VREG}")
    A(f"v_mul_u32_u24 v5, 272, v{i_}")
    A(f"v_lshl_add_u32 v5, v{g_}, 4, v5")
    A(f"v_add_u32 v6, s{S_T0}, v5")
    A(f"v_add_u32 v7, s{S_T1}, v5")
    A("s_waitcnt lgkmcnt(0)")
    A("s_barrier")
    OP = V_KACC
    for ws in range(4):
        o = OP + 16 * ws
        A(f"ds_read_b128 {vr(o,4)}, v6 offset:{64*ws}")
        A(f"ds_read_b128 {vr(o+4,4)}, v6 offset:{64*ws + 16*272}")
        A(f"ds_read_b128 {vr(o+8,4)}, v7 offset:{64*ws}")
        A(f"ds_read_b128 {vr(o+12,4)}, v7 offset:{64*ws + 16*272}")
    T = V_QACC
    for ws in range(4):
        o = OP + 16 * ws
        A(f"s_waitcnt lgkmcnt({12 - 4*ws})")
        C = lambda k: ("0" if ws == 0 else vr(T + 4*k, 4))
        A(f"v_mfma_f32_16x16x32_bf16 {vr(T,4)}, {vr(o+8,4)}, {vr(o,4)}, {C(0)}")
        A(f"v_mfma_f32_16x16x32_bf16 {vr(T+4,4)}, {vr(o+12,4)}, {vr(o,4)}, {C(1)}")
        A(f"v_mfma_f32_16x16x32_bf16 {vr(T+8,4)}, {vr(o+8,4)}, {vr(o+4,4)}, {C(2)}")
        A(f"v_mfma_f32_16x16x32_bf16 {vr(T+12,4)}, {vr(o+12,4)}, {vr(o+4,4)}, {C(3)}")
    A(f"s_sub_u32 s{S_T0}, 4, s{S_WV}")
    A(f"s_add_u32 s{S_T1}, s{S_WV}, 1")
    A(f"s_lshl_b32 s{S_T2}, s{S_T0}, 4")
    A(f"s_lshl_b32 s{S_T3}, s{S_T1}, 4")
    A(f"s_mul_i32 s94, s{S_T0}, 320")
    A(f"v_lshrrev_b32 v4, 2, v{i_}")
    A(f"v_cmp_gt_u32 vcc, s{S_T0}, v4")
    A(f"v_mov_b32 v5, s{S_T3}"); A(f"v_mov_b32 v6, s{S_T2}")
    A("v_cndmask_b32 v5, v5, v6, vcc")
    A(f"v_mov_b32 v6, s94"); A("v_cndmask_b32 v6, v6, 0, vcc")
    A(f"v_lshl_add_u32 v6, v{i_}, 2, v6")
    AD = V_M + 6
    A(f"v_mad_u32_u24 v{AD}, v{g_}, v5, v6")
    A(f"v_lshlrev_b32 v7, 2, v5")
    for j in range(1, 4): A(f"v_add_u32 v{AD+j}, v{AD+j-1}, v7")
    A(f"v_lshl_add_u32 v8, v{g_}, 2, 16")
    A(f"v_mad_u32_u24 v{AD+4}, v8, v5, v6")
    for j in range(1, 4): A(f"v_add_u32 v{AD+4+j}, v{AD+4+j-1}, v5")
    A(f"s_mul_i32 s95, s{S_T0}, 336"); A(f"s_lshl_b32 s94, s{S_WV}, 4"); A(f"s_add_u32 s95, s95, s94")
    A(f"v_lshl_add_u32 v6, v{i_}, 2, s95")
    A(f"v_mad_u32_u24 v{AD+8}, v{g_}, s{S_T3}, v6")
    A(f"v_mad_u32_u24 v{AD+9}, v8, s{S_T3}, v6")
    A(f"s_lshl_b32 s{S_T0}, s{S_HG}, 2"); A(f"s_add_u32 s{S_T0}, s{S_T0}, s{S_WV}"); A(f"s_lshl_b32 s{S_T0}, s{S_T0}, 11")
    A(f"s_add_u32 s93, s{S_T0}, {WS_KV}")
    KB = 93
    A(f"s_lshl_b32 s94, s{S_T3}, 2")
    A(f"s_add_u32 s90, s{KB}, s94"); A(f"s_add_u32 s91, s90, s94"); A(f"s_add_u32 s92, s91, s94")
    A(f"s_add_u32 s96, s{KB}, s{S_T3}"); A(f"s_add_u32 s97, s96, s{S_T3}"); A(f"s_add_u32 s98, s97, s{S_T3}")
    ts(A, "mid_mfma")
    A.flush_hazards()
    def at(v, a, so):
        A(f"buffer_atomic_add_f32 v{v}, v{a}, {WSD}, s{so} offen"); vm.issue('kvat')
    for j in range(4): at(T+j, AD+j, KB)
    set_exec(A, lambda l: l < 32)
    at(T+4, AD+4, KB)
    set_exec(A, lambda l: l < 16)
    for j in range(1, 4): at(T+4+j, AD+4+j, KB)
    set_exec(A, lambda l: (l & 15) < 4)
    for j in range(4): at(T+8+j, AD+8, KB if j == 0 else 89 + j)
    set_exec(A, lambda l: (l & 15) < 4 and l < 32)
    at(T+12, AD+9, KB)
    set_exec(A, lambda l: l < 4)
    for j in range(1, 4): at(T+12+j, AD+9, 95 + j)
    A("s_mov_b64 exec, -1")
    A("s_nop 7")

def f_store_base(A, brv):
    A(f"s_lshl_b32 s{S_T0}, s{S_RB}, 3"); A(f"s_lshl_b32 s{S_T1}, s{S_WV}, 1"); A(f"s_add_u32 s{S_T0}, s{S_T0}, s{S_T1}")
    if brv: A(f"s_add_u32 s{S_T0}, s{S_T0}, 128")
    A(f"s_lshl_b32 s{S_T0}, s{S_T0}, 3"); A(f"s_add_u32 s{S_T0}, s{S_T0}, s{S_HG}")
    A(f"s_mul_i32 s{S_U0}, s{S_T0}, 2560")
    if WS_F: A(f"s_add_u32 s{S_U0}, s{S_U0}, {WS_F}")

def f_stores(A, vm, O, rt, V_L8):
    if rt: A(f"s_add_u32 s{S_SO}, s{S_U0}, 20480")
    else:  A(f"s_mov_b32 s{S_SO}, s{S_U0}")
    A(f"buffer_store_dwordx4 {vr(O,4)}, v{V_P2}, {WSD}, s{S_SO} offen sc1"); vm.issue('ost')
    A(f"buffer_store_dwordx4 {vr(O+4,4)}, v{V_P2}, {WSD}, s{S_SO} offen offset:1024 sc1"); vm.issue('ost')
    A(f"buffer_store_dwordx2 {vr(O+8,2)}, v{V_L8}, {WSD}, s{S_SO} offen offset:2048 sc1"); vm.issue('ost')

def k1_A_end(A, vm, M, P2):
    qacc = M['qacc']
    L = "L1A_"
    TMP = V_WF
    def phi_rt(rt):
        pairs = []
        for t_ in range(5):
            b = qacc(rt, t_)
            for k in range(2):
                pairs.append((b + 2 * k, V_QACC + 20 * rt + 2 * t_ + k))
        A.filler = P2.wfill
        phi_pack_pairs(A, pairs, TMP)
        A.filler = None
    t = V_KACC + 20
    i_, g16, r1, r2, big, g_ = t, t+1, t+2, t+3, t+4, t+5
    KO = V_KACC + 16
    A(f"v_and_b32 v{i_}, 15, v{V_LANE}")
    A(f"v_and_b32 v{g16}, 48, v{V_LANE}")
    A(f"v_lshrrev_b32 v{g_}, 4, v{V_LANE}")
    A(f"v_and_b32 v{r1}, 3, v{i_}"); A(f"v_lshlrev_b32 v{r1}, 6, v{r1}")
    A(f"v_lshrrev_b32 v{r2}, 2, v{i_}")
    A(f"v_lshl_add_u32 v{r1}, v{r2}, 4, v{r1}")
    A(f"v_mov_b32 v{big}, 0x800000")
    A(f"v_lshlrev_b32 v{r2}, 4, v{r2}")
    A(f"v_add_u32 v{r2}, 256, v{r2}")
    set_mask(A, 90, lanemask(lambda l: (l & 3) == 1))
    set_mask(A, 92, lanemask(lambda l: (l & 3) >= 2))
    A(f"v_mov_b32 v{t+6}, 320")
    A(f"v_cndmask_b32 v{r2}, v{r2}, v{t+6}, s[90:91]")
    A(f"v_cndmask_b32 v{r2}, v{r2}, v{big}, s[92:93]")
    A(f"s_sub_u32 s{S_T0}, 4, s{S_WV}")
    A(f"s_add_u32 s{S_T1}, s{S_WV}, 1")
    A(f"s_lshl_b32 s{S_T2}, s{S_WV}, 4")
    A(f"s_mul_i32 s{S_T3}, s{S_T0}, 336")
    A(f"v_subrev_u32 v{t+6}, s{S_T2}, v{g16}")
    A(f"v_add_u32 v{t+7}, s{S_T3}, v{g16}")
    A(f"v_cmp_le_u32 s[90:91], s{S_WV}, v{g_}")
    A(f"v_cmp_ge_u32 s[92:93], s{S_WV}, v{g_}")
    for k, R in enumerate((r1, r2)):
        lo, hi = KO + 2 * k, KO + 2 * k + 1
        A(f"v_mad_u32_u24 v{lo}, v{R}, s{S_T0}, v{t+6}")
        A(f"v_cndmask_b32 v{lo}, v{big}, v{lo}, s[90:91]")
        A(f"v_mad_u32_u24 v{hi}, v{R}, s{S_T1}, v{t+7}")
        A(f"v_cndmask_b32 v{hi}, v{big}, v{hi}, s[92:93]")
    A(f"s_lshl_b32 s{S_T0}, s{S_HG}, 2"); A(f"s_add_u32 s{S_T0}, s{S_T0}, s{S_WV}"); A(f"s_lshl_b32 s{S_T0}, s{S_T0}, 11")
    A(f"s_add_u32 s94, s{S_T0}, {WS_KV}")
    KR = V_KACC
    phi_rt(0)
    poll(A, vm, 'kvp', KV_POLL(), check_flags(A))
    ts(A, "kv_ok")
    for kind in range(4):
        A(f"buffer_load_dwordx4 {vr(KR + 4*kind, 4)}, v{KO + kind}, {WSD}, s{S_U0+1 if False else 94} offen sc1"); vm.issue('kvl')
    phi_rt(1)
    ts(A, "phi")
    vm.wait(A, 'kvl')
    KP = V_KACC + 24
    for k in range(8): A(f"v_cvt_pk_bf16_f32 v{KP+k}, v{KR+2*k}, v{KR+2*k+1}")
    A(f"s_lshl_b32 s{S_T0}, s{S_WV}, 11"); A(f"s_add_u32 s{S_T0}, s{S_T0}, {L_KVX}")
    A(f"v_add_u32 v2, s{S_T0}, v{V_P2}")
    A(f"ds_write_b128 v2, {vr(KP,4)}")
    A(f"ds_write_b128 v2, {vr(KP+4,4)} offset:1024")
    A(f"v_add_u32 v3, {L_KVX}, v{V_P2}")
    f_store_base(A, 0)
    A(f"v_lshlrev_b32 v9, 3, v{V_LANE}")
    CIN = V_M + 8
    A(f"v_mov_b32 v{CIN}, 0"); A(f"v_mov_b32 v{CIN+1}, 0x{f2u(EPS):x}"); A(f"v_mov_b32 v{CIN+2}, 0"); A(f"v_mov_b32 v{CIN+3}, 0")
    A("s_waitcnt lgkmcnt(0)")
    A("s_barrier")
    KO_ = V_KACC + 32
    for h in range(4):
        A(f"ds_read_b128 {vr(KO_ + 8*h, 4)}, v3 offset:{2048*h}")
        A(f"ds_read_b128 {vr(KO_ + 8*h + 4, 4)}, v3 offset:{2048*h + 1024}")
    gate_check(A, vm)
    A("s_waitcnt lgkmcnt(0)")
    ts(A, "kv_lds")
    DT = V_WF + 8
    OO = V_KACC
    def oc_mfma(rt):
        out = []
        for h in range(4):
            B = vr(V_QACC + 20*rt + 2*h, 4)
            D1 = DT + 32*rt + 4*h; D2 = DT + 32*rt + 16 + 4*h
            out.append(f"v_mfma_f32_16x16x32_bf16 {vr(D2,4)}, {vr(KO_ + 8*h + 4,4)}, {B}, {vr(CIN,4)}")
            out.append(f"v_mfma_f32_16x16x32_bf16 {vr(D1,4)}, {vr(KO_ + 8*h,4)}, {B}, 0")
        return out
    def oc_valu(rt):
        out = []
        D1 = lambda h: DT + 32*rt + 4*h
        D2 = lambda h: DT + 32*rt + 16 + 4*h
        O = OO + 12 * rt
        for h in range(4): out.append(f"v_rcp_f32 v{D2(h)+2}, v{D2(h)+1}")
        for h in range(4): out.append(f"v_mul_f32 v{D2(h)+2}, v{D2(h)+2}, v{V_G+rt}")
        for h in range(4):
            out.append(f"v_pk_mul_f32 {vr(D1(h),2)}, {vr(D1(h),2)}, {vr(D2(h)+2,2)} op_sel_hi:[1,0]")
            out.append(f"v_pk_mul_f32 {vr(D1(h)+2,2)}, {vr(D1(h)+2,2)}, {vr(D2(h)+2,2)} op_sel_hi:[1,0]")
            out.append(f"v_mul_f32 v{D2(h)}, v{D2(h)}, v{D2(h)+2}")
        for h in range(4):
            out.append(f"v_cvt_pk_bf16_f32 v{O+2*h}, v{D1(h)}, v{D1(h)+1}")
            out.append(f"v_cvt_pk_bf16_f32 v{O+2*h+1}, v{D1(h)+2}, v{D1(h)+3}")
        out.append(f"v_cvt_pk_bf16_f32 v{O+8}, v{D2(0)}, v{D2(1)}")
        out.append(f"v_cvt_pk_bf16_f32 v{O+9}, v{D2(2)}, v{D2(3)}")
        return out
    P2.early_poll()
    for m in oc_mfma(0): A(m)
    for m in oc_mfma(1): A(m)
    for x in oc_valu(0): A(x)
    f_stores(A, vm, OO, 0, 9)
    for x in oc_valu(1): A(x)
    f_stores(A, vm, OO + 12, 1, 9)
    ts(A, "o_stored")

def k1_B_mid(A, vm, M):
    L = "L1B_"
    for t in range(5):
        b = V_VACC + 8 * t
        A(f"v_cvt_pk_bf16_f32 v{b+3}, v{b+2}, v{b+3}")
        A(f"v_cvt_pk_bf16_f32 v{b+2}, v{b}, v{b+1}")
        A(f"v_cvt_pk_bf16_f32 v{b+4}, v{b+4}, v{b+5}")
        A(f"v_cvt_pk_bf16_f32 v{b+5}, v{b+6}, v{b+7}")
    for rt in range(2):
        b = V_KACC + 20 * rt
        for k in range(10):
            A(f"v_cvt_pk_bf16_f32 v{b+k}, v{b+2*k}, v{b+2*k+1}")
    A(f"v_lshlrev_b32 v2, 3, v{V_LANE}")
    A(f"s_cmp_eq_u32 s{S_WV}, 3"); A(f"s_cbranch_scc1 {L}hg")
    A(f"s_mul_i32 s{S_T0}, s{S_WV}, 5120"); A(f"s_add_u32 s{S_T0}, s{S_T0}, {L_HALO}")
    A(f"v_add_u32 v3, s{S_T0}, v2")
    for q in range(5):
        A(f"ds_write_b64 v3, {vr(V_KACC + 20 + 2*q, 2)} offset:{512*q}")
    for q in range(5):
        A(f"ds_write_b64 v3, {vr(V_VACC + 8*q + 4, 2)} offset:{512*(5+q)}")
    A(f"s_branch {L}hd")
    A(f"{L}hg:")
    A(f"s_lshl_b32 s{S_T0}, s{S_RB}, 3"); A(f"s_add_u32 s{S_T0}, s{S_T0}, s{S_HG}"); A(f"s_mul_i32 s{S_T0}, s{S_T0}, 5120")
    A(f"s_add_u32 s{S_T0}, s{S_T0}, {WS_HALO}")
    for q in range(5):
        A(f"buffer_store_dwordx2 {vr(V_KACC + 20 + 2*q, 2)}, v2, {WSD}, s{S_T0} offen offset:{512*q} sc1")
    A(f"s_add_u32 s{S_T1}, s{S_T0}, 2560")
    for q in range(5):
        A(f"buffer_store_dwordx2 {vr(V_VACC + 8*q + 4, 2)}, v2, {WSD}, s{S_T1} offen offset:{512*q} sc1")
    A(f"{L}hd:")
    vm.halo_marker = len(vm.ops)

def k1_B_end(A, vm, M, P2):
    L = "L1B_"
    KPREV = V_KACC + 10
    BIAS = V_M + 8
    ONES = V_M + 12
    MK = V_M + 16
    set_mask(A, SM_PAR, lanemask(lambda l: l & 1))
    set_mask(A, SM_C0, lanemask(lambda l: 4 * (l >> 4) + (l & 1) <= (l & 15)))
    set_mask(A, SM_C1, lanemask(lambda l: 4 * (l >> 4) + (l & 1) + 2 <= (l & 15)))
    for h, s in ((1, SM_GE1), (2, SM_GE2), (3, SM_GE3)):
        set_mask(A, s, lanemask(lambda l: (l >> 4) >= h))
    GE = {1: SM_GE1, 2: SM_GE2, 3: SM_GE3}
    A("s_barrier")
    ts(A, "Bbar")
    A("v_mov_b32 v2, 0xffff"); A("v_mov_b32 v3, 0xffff0000")
    A(f"v_cndmask_b32 v2, v2, v3, {sm(SM_PAR)}")
    A(f"v_cndmask_b32 v{MK}, v2, 0, {sm(SM_C0)}")
    A(f"v_cndmask_b32 v{MK+1}, 0, v2, {sm(SM_C0)}")
    A(f"v_cndmask_b32 v{MK+2}, v2, 0, {sm(SM_C1)}")
    A(f"v_cndmask_b32 v{MK+3}, 0, v2, {sm(SM_C1)}")
    for k in range(4): A(f"v_mov_b32 v{ONES+k}, 0x3f803f80")
    for k in range(4): A(f"v_mov_b32 v{BIAS+k}, 0")
    for rt in range(2):
        b = V_QACC + 20 * rt
        for k in range(10):
            A(f"v_cvt_pk_bf16_f32 v{b+k}, v{b+2*k}, v{b+2*k+1}")
    A(f"v_lshlrev_b32 v2, 3, v{V_LANE}")
    A(f"s_cmp_eq_u32 s{S_WV}, 0"); A(f"s_cbranch_scc1 {L}pg")
    A(f"s_mul_i32 s{S_T0}, s{S_WV}, 5120"); A(f"s_add_u32 s{S_T0}, s{S_T0}, {L_HALO - 5120}")
    A(f"v_add_u32 v3, s{S_T0}, v2")
    for q in range(5):
        A(f"ds_read_b64 {vr(KPREV + 2*q, 2)}, v3 offset:{512*q}")
    for q in range(5):
        A(f"ds_read_b64 {vr(V_VACC + 8*q, 2)}, v3 offset:{512*(5+q)}")
    A("s_waitcnt lgkmcnt(0)")
    A(f"s_branch {L}pd")
    A(f"{L}pg:")
    A(f"s_cmp_eq_u32 s{S_RB}, 0"); A(f"s_cbranch_scc1 {L}pz")
    poll(A, vm, 'kvp', KV_POLL(), check_flags(A))
    A(f"s_sub_u32 s{S_T3}, s{S_RB}, 1")
    A(f"s_lshl_b32 s{S_T0}, s{S_T3}, 3"); A(f"s_add_u32 s{S_T0}, s{S_T0}, s{S_HG}"); A(f"s_mul_i32 s{S_T0}, s{S_T0}, 5120")
    A(f"s_add_u32 s{S_T0}, s{S_T0}, {WS_HALO}")
    for q in range(5):
        A(f"buffer_load_dwordx2 {vr(KPREV + 2*q, 2)}, v2, {WSD}, s{S_T0} offen offset:{512*q} sc1")
    A(f"s_add_u32 s{S_T1}, s{S_T0}, 2560")
    for q in range(5):
        A(f"buffer_load_dwordx2 {vr(V_VACC + 8*q, 2)}, v2, {WSD}, s{S_T1} offen offset:{512*q} sc1")
    A("s_waitcnt vmcnt(0)")
    A(f"s_branch {L}pd")
    A(f"{L}pz:")
    for q in range(10): A(f"v_mov_b32 v{KPREV+q}, 0")
    for q in range(5):
        A(f"v_mov_b32 v{V_VACC+8*q}, 0"); A(f"v_mov_b32 v{V_VACC+8*q+1}, 0")
    for k in range(4): A(f"v_mov_b32 v{BIAS+k}, 0x{f2u(-1e30):x}")
    A(f"{L}pd:")
    A.flush_hazards()
    ts(A, "Bpd")
    gate_check(A, vm)
    for rt in range(2): A(f"v_sub_f32 v{V_G+rt}, 1.0, v{V_G+rt}")
    ts(A, "B_prev_ready")
    SC = (20 ** -0.5) * LOG2E
    A(f"s_mov_b32 s{S_C1}, 0x{f2u(SC):x}")
    f_store_base(A, 1)
    A(f"v_lshlrev_b32 v9, 3, v{V_LANE}")
    A.filler = P2.wfill
    T = V_WF
    QM = T; SP = T + 16; SCU = T + 32; X0 = T + 48; X1 = T + 52; MX = T + 56; PP = T + 60
    for rt in range(2):
        Q = V_QACC + 20 * rt
        KC = V_KACC + 20 * rt
        KP = KPREV if rt == 0 else V_KACC
        for h in range(4):
            for k in range(2):
                src = Q + 2 * h + k
                if h == 0: A(f"v_mov_b32 v{QM+4*h+k}, v{src}")
                else:      A(f"v_cndmask_b32 v{QM+4*h+k}, 0, v{src}, {sm(GE[h])}")
            for k in range(2):
                src = Q + 2 * (h + 1) + k
                if h == 3: A(f"v_mov_b32 v{QM+4*h+2+k}, v{src}")
                else:      A(f"v_cndmask_b32 v{QM+4*h+2+k}, v{src}, 0, {sm(GE[h+1])}")
        for h in range(4):
            Cb = vr(BIAS, 4) if rt == 0 else "0"
            A(f"v_mfma_f32_16x16x32_bf16 {vr(SP+4*h,4)}, {vr(KP+2*h,4)}, {vr(QM+4*h,4)}, {Cb}")
            A(f"v_mfma_f32_16x16x32_bf16 {vr(SCU+4*h,4)}, {vr(KC+2*h,4)}, {vr(QM+4*h,4)}, 0")
        for h in range(4):
            p, c = SP + 4 * h, SCU + 4 * h
            A(f"v_cndmask_b32 v{p}, v{p}, v{p+1}, {sm(SM_PAR)}")
            A(f"v_cndmask_b32 v{c}, v{c}, v{c+1}, {sm(SM_PAR)}")
            A(f"v_cndmask_b32 v{p+2}, v{p+2}, v{p+3}, {sm(SM_PAR)}")
            A(f"v_cndmask_b32 v{c+2}, v{c+2}, v{c+3}, {sm(SM_PAR)}")
            A(f"v_cndmask_b32 v{X0+h}, v{p}, v{c}, {sm(SM_C0)}")
            A(f"v_cndmask_b32 v{X1+h}, v{p+2}, v{c+2}, {sm(SM_C1)}")
            A(f"v_max_f32 v{MX+h}, v{X0+h}, v{X1+h}")
        a0, a1, a2, a3 = MX, MX + 1, MX + 2, MX + 3
        A(f"v_permlane32_swap_b32 v{a0}, v{a1}")
        A(f"v_permlane32_swap_b32 v{a2}, v{a3}")
        A(f"v_max_f32 v{a0}, v{a0}, v{a1}")
        A(f"v_max_f32 v{a2}, v{a2}, v{a3}")
        A(f"v_permlane16_swap_b32 v{a0}, v{a2}")
        A(f"v_max_f32 v{a0}, v{a0}, v{a2}")
        A(f"v_mul_f32 v{a0}, s{S_C1}, v{a0}")
        A(f"v_mov_b32 v{a2}, v{a0}")
        A(f"v_permlane16_swap_b32 v{a0}, v{a2}")
        A(f"v_mov_b32 v{a1}, v{a0}")
        A(f"v_mov_b32 v{a3}, v{a2}")
        A(f"v_permlane32_swap_b32 v{a0}, v{a1}")
        A(f"v_permlane32_swap_b32 v{a2}, v{a3}")
        for h in range(4):
            A(f"v_fma_f32 v{X0+h}, v{X0+h}, s{S_C1}, -v{MX+h}")
            A(f"v_fma_f32 v{X1+h}, v{X1+h}, s{S_C1}, -v{MX+h}")
        for h in range(4):
            A(f"v_exp_f32 v{X0+h}, v{X0+h}")
            A(f"v_exp_f32 v{X1+h}, v{X1+h}")
        for h in range(4):
            A(f"v_cvt_pk_bf16_f32 v{X0+h}, v{X0+h}, v{X0+h}")
            A(f"v_cvt_pk_bf16_f32 v{X1+h}, v{X1+h}, v{X1+h}")
        for h in range(4):
            p = PP + 4 * h
            A(f"v_and_b32 v{p}, v{X0+h}, v{MK}")
            A(f"v_and_b32 v{p+1}, v{X1+h}, v{MK+2}")
            A(f"v_and_b32 v{p+2}, v{X0+h}, v{MK+1}")
            A(f"v_and_b32 v{p+3}, v{X1+h}, v{MK+3}")
        for h in range(4):
            vo = 0 if rt == 0 else 2
            A(f"v_mfma_f32_16x16x32_bf16 {vr(SCU+4*h,4)}, {vr(ONES,4)}, {vr(PP+4*h,4)}, 0")
            A(f"v_mfma_f32_16x16x32_bf16 {vr(QM+4*h,4)}, {vr(V_VACC+8*h+vo,4)}, {vr(PP+4*h,4)}, 0")
            A(f"v_mfma_f32_16x16x32_bf16 {vr(SP+4*h,4)}, {vr(V_VACC+8*(h+1)+vo,4)}, {vr(PP+4*h,4)}, 0")
        for h in range(4):
            A(f"v_rcp_f32 v{MX+h}, v{SCU+4*h}")
        for h in range(4):
            A(f"v_mul_f32 v{MX+h}, v{MX+h}, v{V_G+rt}")
        for t in range(1, 4):
            A(f"v_cndmask_b32 v{X0+t}, v{MX+t-1}, v{MX+t}, {sm(GE[t])}")
        for t in range(5):
            if t == 0:   src = [QM + j for j in range(4)]; r = MX
            elif t == 4: src = [SP + 12 + j for j in range(4)]; r = MX + 3
            else:
                for j in range(4):
                    A(f"v_cndmask_b32 v{QM+4*t+j}, v{SP+4*(t-1)+j}, v{QM+4*t+j}, {sm(GE[t])}")
                src = [QM + 4 * t + j for j in range(4)]; r = X0 + t
            for j in range(4):
                A(f"v_mul_f32 v{src[j]}, v{src[j]}, v{r}")
            o = PP + 2 * t
            A(f"v_cvt_pk_bf16_f32 v{o}, v{src[0]}, v{src[1]}")
            A(f"v_cvt_pk_bf16_f32 v{o+1}, v{src[2]}, v{src[3]}")
        if rt == 1: P2.early_poll()
        f_stores(A, vm, PP, rt, 9)
        A("s_nop 1")
    A.filler = None
    ts(A, "o_stored")

class Phase2:
    V_ACC = 32
    V_OB = 112
    A_OA = 104
    V_OA2 = 192
    S_RT, S_OB, S_OA = 36, 40, 52
    S_FLO, S_FLP, S_OUT = 64, 65, 66
    V_L8, V_L8B, V_FA, V_LR, V_ST, V_LW = 10, 11, 12, 13, 14, 15
    def __init__(self, A, vm):
        self.A = A; self.vm = vm
        self.wlist = [(b, s, ct) for b in (0, 1) for s in range(5) for ct in range(5)]
        self.widx = {k: i for i, k in enumerate(self.wlist)}
        self.cnt = 0; self.issued = 0; self.allow = 0; self.every = WFILL
    def wreg(self, b, s, ct):
        f = self.widx[(b, s, ct)]
        return ar(160 + 4 * f, 4) if f < 24 else ar(4 * (f - 24), 4)
    def oa_reg(self, p, s, n=4, off=0):
        k = 5 * p + s
        return ar(self.A_OA + 4 * k + off, n) if k < 14 else vr(self.V_OA2 + 4 * (k - 14) + off, n)
    def ob_reg(self, p, s, n=4, off=0): return vr(self.V_OB + 4 * (5 * p + s) + off, n)
    def setup_w(self):
        A = self.A
        A(f"s_mul_i32 s{S_WPA}, s{S_CG}, 102400"); A(f"s_mul_i32 s{S_T1}, s{S_WV}, 25600"); A(f"s_add_u32 s{S_WPA}, s{S_WPA}, s{S_T1}")
        A(f"s_add_u32 s{S_WPA}, s{S_WPA}, {WS_WP}")
        A(f"s_add_u32 s{S_WPB}, s{S_WPA}, 819200")
    def wgroup(self):
        if not self.wlist or self.issued >= self.allow: return None
        b, s, ct = self.wlist.pop(0); self.issued += 1
        base = S_WPB if b == 0 else S_WPA
        g = []
        if ct == 0: g.append(f"s_add_u32 s71, s{base}, {5120*s}")
        if ct == 4: g.append(f"s_add_u32 s89, s{base}, {5120*s + 4096}")
        if ct < 4: g.append((f"buffer_load_dwordx4 {self.wreg(b,s,ct)}, v{V_P2}, {WSD}, s71 offen offset:{1024*ct} sc1", f"w{b}_{s}"))
        else:      g.append((f"buffer_load_dwordx4 {self.wreg(b,s,ct)}, v{V_P2}, {WSD}, s89 offen sc1", f"w{b}_{s}"))
        return g
    def wgroups(self, n):
        out = []
        for _ in range(n):
            g = self.wgroup()
            if g: out.append(g)
        return out
    def wload(self):
        A = self.A
        g = self.wgroup()
        if not g: return
        f = A.filler; A.filler = None
        for x in g:
            if isinstance(x, tuple): A(x[0]); self.vm.issue(x[1])
            else: A(x)
        A.filler = f
    def wfill(self):
        self.cnt += 1
        if self.cnt % self.every == 0: self.wload()
    def prep(self):
        A = self.A
        S_RT, S_OB, S_OA = self.S_RT, self.S_OB, self.S_OA
        A(f"s_lshl_b32 s90, s{S_RB}, 1"); A(f"s_add_u32 s90, s90, s{S_BR}"); A("s_lshl_b32 s90, s90, 3"); A(f"s_add_u32 s90, s90, s{S_HG}")
        A("s_lshl_b32 s90, s90, 2"); A(f"s_add_u32 s90, s90, s{S_WV}"); A("s_lshl_b32 s90, s90, 7"); A(f"s_add_u32 s{self.S_FLO}, s90, {WS_FLG + FL_OD}")
        for p in range(4):
            A(f"s_add_u32 s{S_RT+p}, s{S_WV}, {p+1}"); A(f"s_and_b32 s{S_RT+p}, s{S_RT+p}, 3")
            A(f"s_lshl_b32 s{S_T0}, s{S_RHO}, 2"); A(f"s_add_u32 s{S_T0}, s{S_T0}, s{S_RT+p}")
            A(f"s_mul_i32 s{S_T0}, s{S_T0}, 20480"); A(f"s_mul_i32 s{S_T1}, s{S_WV}, 5120")
            A(f"s_add_u32 s{S_OA+p}, s{S_T0}, s{S_T1}")
            if WS_F: A(f"s_add_u32 s{S_OA+p}, s{S_OA+p}, {WS_F}")
            A(f"s_add_u32 s{S_OB+p}, s{S_OA+p}, {128*20480}")
        A(f"v_lshlrev_b32 v{self.V_L8}, 3, v{V_LANE}")
        A(f"v_add_u32 v{self.V_L8B}, 2560, v{self.V_L8}")
        A(f"v_bfe_u32 v7, v{V_LANE}, 2, 1"); A("v_xor_b32 v7, 1, v7"); A("v_lshlrev_b32 v7, 5, v7")
        A(f"v_bfe_u32 v8, v{V_LANE}, 1, 1"); A("v_lshl_add_u32 v7, v8, 2, v7")
        A(f"v_and_b32 v8, 1, v{V_LANE}"); A("v_add_u32 v7, v8, v7")
        A(f"v_lshlrev_b32 v{self.V_FA}, 7, v7")
        A(f"s_lshl_b32 s{S_T0}, s{S_WV}, 3"); A(f"s_and_b32 s{S_T1}, s{S_RHO}, 1"); A(f"s_lshl_b32 s{S_T1}, s{S_T1}, 1"); A(f"s_add_u32 s{S_T0}, s{S_T0}, s{S_T1}")
        A(f"s_lshr_b32 s{S_T1}, s{S_RHO}, 1"); A(f"s_lshl_b32 s{S_T1}, s{S_T1}, 6"); A(f"s_add_u32 s{S_T0}, s{S_T0}, s{S_T1}")
        A(f"s_lshl_b32 s{S_T0}, s{S_T0}, 7")
        A(f"s_add_u32 s{self.S_FLP}, s{S_T0}, {WS_FLG + FL_OD}")
        A(f"s_mul_i32 s{S_T0}, s{S_WV}, 15360")
        A(f"v_add_u32 v{self.V_LR}, s{S_T0}, v{V_P2}")
        A(f"v_and_b32 v{self.V_ST}, 15, v{V_LANE}"); A(f"v_mul_u32_u24 v{self.V_ST}, 1280, v{self.V_ST}")
        A(f"v_lshrrev_b32 v9, 4, v{V_LANE}"); A(f"v_lshl_add_u32 v{self.V_ST}, v9, 3, v{self.V_ST}")
        A(f"s_lshl_b32 s{S_T0}, s{S_RHO}, 2"); A(f"s_add_u32 s{S_T0}, s{S_T0}, s{S_WV}"); A(f"s_mul_i32 s{self.S_OUT}, s{S_T0}, 20480")
        A(f"s_mul_i32 s{S_T0}, s{S_CG}, 160"); A(f"s_add_u32 s{self.S_OUT}, s{self.S_OUT}, s{S_T0}")
        for p in range(3):
            A(f"s_mul_i32 s{S_T0}, s{S_RT+p}, 15360"); A(f"s_add_u32 s{S_T0}, s{S_T0}, {p*5120}")
            A(f"v_add_u32 v{self.V_LW+p}, s{S_T0}, v{V_P2}")
    def PL(self): return f"buffer_load_dwordx2 {vr(V_POLL,2)}, v{self.V_FA}, {WSD}, s{self.S_FLP} offen sc1"
    def early_poll(self):
        self.A(self.PL()); self.vm.issue('odp0')
    def oloads(self, vm, br):
        A = self.A
        base = self.S_OB if br else self.S_OA
        reg = self.ob_reg if br else self.oa_reg
        order = [(p, s) for s in range(5) for p in range(4)] if br else [(p, s) for p in range(4) for s in range(5)]
        for p, s in order:
            if s < 4:
                off = (0, 1024, 2560, 3584)[s]
                A(f"buffer_load_dwordx4 {reg(p,s)}, v{V_P2}, {WSD}, s{base+p} offen offset:{off} sc1"); vm.issue(f"o{br}_{p}_{s}")
            else:
                A(f"buffer_load_dwordx2 {reg(p,s,2,0)}, v{self.V_L8}, {WSD}, s{base+p} offen offset:2048 sc1"); vm.issue(f"o{br}_{p}_{s}")
                A(f"buffer_load_dwordx2 {reg(p,s,2,2)}, v{self.V_L8B}, {WSD}, s{base+p} offen offset:2048 sc1"); vm.issue(f"o{br}_{p}_{s}")
    def acc(self, p, ct): return self.V_ACC + 20*p + 4*ct
    def bstep(self, vm, s):
        A = self.A
        for p in range(4):
            vm.wait(A, f"o1_{p}_{s}")
            for ct in range(5):
                a = vr(self.acc(p, ct), 4)
                A(f"v_mfma_f32_16x16x32_bf16 {a}, {self.wreg(0,s,ct)}, {self.ob_reg(p,s)}, {'0' if s == 0 else a}")
    def run(self):
        import copy
        A, vm = self.A, self.vm
        A.filler = None
        self.allow = 50
        if self.wlist: print("WARNING leftover W loads", len(self.wlist))
        while self.wlist: self.wload()
        mB = lanemask(lambda l: ((l >> 2) & 1) == 0)
        mA = lanemask(lambda l: ((l >> 2) & 1) == 1)
        PL = self.PL()
        def chk(m):
            check_flags(A, m)()
        def own_flag():
            A(f"v_mov_b32 v{V_NON}, s{S_NON}"); A(f"v_mov_b32 v{V_NON+1}, s{S_NON+1}")
            flag_store(A, self.S_FLO)
        LATE, V1, V2, J = "LP2_late", "LP2_v1", "LP2_v2", "LP2_j"
        tag = S_TAG[0]
        LATE += tag; V1 += tag; V2 += tag; J += tag
        vm.wait(A, 'odp0')
        chk(mB)
        A(f"s_cbranch_scc0 {LATE}")
        chk(mA)
        A(f"s_cbranch_scc0 {LATE}_eb")
        v = copy.deepcopy(vm)
        self.oloads(v, 1); self.oloads(v, 0)
        v.wait(A, 'ost'); ts(A, "drained")
        own_flag(); v.issue('x')
        vm1 = v
        A(f"s_branch {V1}")
        A(f"{LATE}_eb:"); A.flush_hazards()
        v = copy.deepcopy(vm)
        self.oloads(v, 1); A(PL); v.issue('odp1')
        v.wait(A, 'ost'); ts(A, "drained", same=True)
        own_flag(); v.issue('x')
        vm2 = v
        A(f"s_branch {V2}")
        A(f"{LATE}:"); A.flush_hazards()
        A("s_waitcnt vmcnt(0)"); ts(A, "drained", same=True)
        own_flag()
        A(PL); A("s_waitcnt vmcnt(0)")
        poll(A, vm, 'odp0', PL, lambda: chk(mB), pre_wait=False)
        chk(mA)
        A(f"s_cbranch_scc0 {LATE}_lb")
        v = VM(); self.oloads(v, 1); self.oloads(v, 0); A(PL); v.issue('x')
        assert v.ops == vm1.ops[-len(v.ops):]
        A(f"s_branch {V1}")
        A(f"{LATE}_lb:"); A.flush_hazards()
        v = VM(); self.oloads(v, 1); A(PL); v.issue('odp1')
        A(f"buffer_load_dwordx2 v[2:3], v{self.V_FA}, {WSD}, s{self.S_FLP} offen sc1"); v.issue('x')
        assert v.ops == vm2.ops[-len(v.ops):]
        A(f"{V2}:"); A.flush_hazards()
        ts(A, "pollB")
        v = vm2
        for s in range(4): self.bstep(v, s)
        v.wait(A, 'odp1')
        chk(mA)
        A(f"s_cbranch_scc0 {V2}_n")
        va = VM(); self.oloads(va, 0); A(PL); va.issue('x')
        ts(A, "pollA")
        for p in range(4):
            for ct in range(5):
                a = vr(self.acc(p, ct), 4)
                A(f"v_mfma_f32_16x16x32_bf16 {a}, {self.wreg(0,4,ct)}, {self.ob_reg(p,4)}, {a}")
        A(f"s_branch {J}")
        A(f"{V2}_n:"); A.flush_hazards()
        for p in range(4):
            for ct in range(5):
                a = vr(self.acc(p, ct), 4)
                A(f"v_mfma_f32_16x16x32_bf16 {a}, {self.wreg(0,4,ct)}, {self.ob_reg(p,4)}, {a}")
        A(PL); A("s_waitcnt vmcnt(0)")
        poll(A, vm, 'odp0', PL, lambda: chk(mA), pre_wait=False)
        vb = VM(); self.oloads(vb, 0); A(PL); vb.issue('x')
        ts(A, "pollA", same=True)
        A(f"s_branch {J}")
        A(f"{V1}:"); A.flush_hazards()
        ts(A, "pollB", same=True); ts(A, "pollA", same=True)
        for s in range(5): self.bstep(vm1, s)
        A(f"{J}:"); A.flush_hazards()
        ts(A, "bpart")
        vm = va
        acc = self.acc
        RD = self.V_OB
        fill = []
        for p in range(4):
            k = 0
            for s in range(5):
                vm.wait(A, f"o0_{p}_{s}")
                for ct in range(5):
                    a = vr(acc(p, ct), 4)
                    A(f"v_mfma_f32_16x16x32_bf16 {a}, {self.wreg(1,s,ct)}, {self.oa_reg(p,s)}, {a}")
                    if fill and s >= 1: A(fill.pop(0))
                if p == 3 and s == 1:
                    assert not fill
                    A("s_waitcnt lgkmcnt(0)")
                    A("s_barrier")
                    ts(A, "apart")
                    fill = [f"ds_read_b128 {vr(RD + 20*sl + 4*ct, 4)}, v{self.V_LR} offset:{(sl*5 + ct)*1024}" for ct in range(5) for sl in range(3)]
            for x in fill: A(x)
            fill = [f"ds_write_b128 v{self.V_LW+p}, {vr(acc(p, ct), 4)} offset:{1024*ct}" for ct in range(5)] if p < 3 else []
        OUTD = f"s[{SRD_OUT}:{SRD_OUT+3}]"
        for ct in range(5):
            A(f"s_waitcnt lgkmcnt({12 - 3*ct})")
            for sl in range(3):
                for k in (0, 2):
                    x = vr(acc(3, ct) + k, 2)
                    A(f"v_pk_add_f32 {x}, {x}, {vr(RD + 20*sl + 4*ct + k, 2)}")
            a = acc(3, ct)
            A(f"v_cvt_pk_bf16_f32 v{a}, v{a}, v{a+1}")
            A(f"v_cvt_pk_bf16_f32 v{a+1}, v{a+2}, v{a+3}")
            A(f"buffer_store_dwordx2 {vr(a, 2)}, v{self.V_ST}, {OUTD}, s{self.S_OUT} offen offset:{32*ct}")

S_TAG = ['']
class Asm3(Asm):
    def __init__(self):
        super().__init__(); self.filler = None
    def I(self, text):
        ins = super().I(text)
        if self.filler and ins.kind in ('valu', 'trans', 'mfma') and not text.startswith('v_cmp') :
            f = self.filler
            f()
        return ins

def kdesc(name, vgpr, accum, lds=0):
    return f""".amdhsa_kernel {name}
  .amdhsa_next_free_vgpr {vgpr}
  .amdhsa_next_free_sgpr 102
  .amdhsa_accum_offset {accum}
  .amdhsa_group_segment_fixed_size 0
  .amdhsa_kernarg_size 80
  .amdhsa_user_sgpr_count 2
  .amdhsa_user_sgpr_kernarg_segment_ptr 1
  .amdhsa_system_sgpr_workgroup_id_x 1
.end_amdhsa_kernel
"""

HEADER = open('cdna_kernels/' + NAME + '.s.ref').read().split('; Override launch')[0]

def main():
    args = [a for a in sys.argv[1:] if not a.startswith('--')]
    out = args[0] if args else 'cdna_kernels/' + NAME + '.s'
    A = Asm3()
    gen_k1(A)
    txt = HEADER
    txt += f"; @launch grid=(256,1,1) block=(256,1,1) lds={K1_LDS}\n"
    txt += '.amdgcn_target "amdgcn-amd-amdhsa--gfx950"\n.text\n'
    txt += A.text()
    txt += '.section .rodata,"a"\n.p2align 6\n'
    txt += kdesc(K1, 512, 256)
    open(out, 'w').write(txt)

if __name__ == '__main__':
    main()
```

```python
import sys, struct
from asmfw import *

NAME = "gated_mix__linear_attn_block__sliding_local_dilated__prompt"
K1 = NAME + "_kernel"

def f2u(x): return struct.unpack('<I', struct.pack('<f', x))[0]

WS_F    = 0
WS_KV   = 0x500000
WS_GATE = 0x510000
WS_FLG  = 0x520000
FL_ED, FL_KVD, FL_HF, FL_OD = 0, 0x8000, 0x18000, 0x20000
WS_HALO = 0x560000
WS_WP   = 0x600000
WS_TS   = 0x800000
WS_SIZE = 0x900000

L_W   = 0
L_X   = 81920
L_KREG = L_X
L_VREG = L_X + 80 * 272
L_HALO = L_X
L_UNIT = 147456
L_KVX  = 155648
K1_LDS = 163840

LOG2E = 1.4426950408889634
EPS = 1e-6
POLL_LIM = 0x20000

def lanemask(fn):
    m = 0
    for l in range(64):
        if fn(l): m |= 1 << l
    return m

TS = '--ts' in sys.argv
def _arg(name, d):
    for a in sys.argv:
        if a.startswith(f'--{name}='): return int(a.split('=')[1])
    return d
PRO_N = _arg('pron', 18); Q_EARLY = _arg('qe', 9); N_EARLY = _arg('ne', 1); Q0 = _arg('q0', 4); Q1 = _arg('q1', 5); PH_OFF = _arg('phoff', 1)
WFILL = _arg('wfill', 6)
class TSt:
    n = 0
    names = []
def ts(A, name, vreg=255, same=False):
    if not TS: return
    A("s_memtime s[100:101]")
    A("s_waitcnt lgkmcnt(0)")
    if same:
        A(f"v_writelane_b32 v{vreg}, s100, {TSt.names.index(name)}")
        return
    A(f"v_writelane_b32 v{vreg}, s100, {TSt.n}")
    TSt.names.append(name); TSt.n += 1
TSN = []
def ts_reset(tag):
    if TS and TSt.names: TSN.append(f"; TSNAMES {tag} {TSt.names}")
    TSt.n = 0; TSt.names = []
TSDBG = _arg('tsdbg', -1)
def ts_store(A, srd_, vreg=255):
    if not TS: return
    if TSDBG >= 0:
        l = newlbl("td")
        A(f"s_lshl_b32 s100, s2, 2"); A(f"s_add_u32 s100, s100, s6"); A(f"s_cmp_lg_u32 s100, {TSDBG*4}"); A(f"s_cbranch_scc1 {l}")
        sel = [a.split('=')[1].split(',') for a in sys.argv if a.startswith('--tssel=')][0]
        A("s_memrealtime s[98:99]"); A("s_waitcnt lgkmcnt(0)")
        A(f"v_readlane_b32 s97, v254, 0"); A("s_sub_u32 s98, s98, s97")
        A(f"v_readlane_b32 s96, v{vreg}, 0")
        A("v_mov_b32 v2, 0"); A("v_mov_b32 v3, s98"); A("s_nop 4")
        A("s_mov_b64 exec, 1")
        A(f"buffer_store_dword v3, v2, {DBGD}, 0 offen offset:8")
        A("s_mov_b64 exec, -1")
        for i, nme in enumerate(sel):
            if nme not in TSt.names: continue
            A(f"v_readlane_b32 s97, v{vreg}, {TSt.names.index(nme)}"); A("s_sub_u32 s97, s97, s96"); A("v_mov_b32 v3, s97")
            A("s_mov_b64 exec, 1")
            A(f"buffer_store_dword v3, v2, {DBGD}, 0 offen offset:{12 + 4*i}")
            A("s_mov_b64 exec, -1")
        A(f"{l}:")
        return
    A(f"s_lshl_b32 s100, s2, 2"); A(f"s_add_u32 s100, s100, s6"); A("s_lshl_b32 s100, s100, 8")
    A(f"s_add_u32 s100, s100, {WS_TS}")
    A("v_mbcnt_lo_u32_b32 v1, -1, 0"); A("v_mbcnt_hi_u32_b32 v1, -1, v1"); A("v_lshlrev_b32 v1, 2, v1")
    A(f"buffer_store_dword v{vreg}, v1, s[{srd_}:{srd_+3}], s100 offen")

class VM:
    def __init__(self): self.ops = []
    def issue(self, tag): self.ops.append(tag)
    def idx(self, tag): return max(i for i, t in enumerate(self.ops) if t == tag)
    def n_after(self, *tags):
        n = 63
        for tag in tags:
            assert tag in self.ops, tag
            n = min(n, len(self.ops) - 1 - self.idx(tag))
        return n
    def wait(self, A, *tags, lgkm=False):
        n = self.n_after(*tags)
        A(f"s_waitcnt vmcnt({n})" + (" lgkmcnt(0)" if lgkm else ""))

def set_mask(A, s, m):
    A(f"s_mov_b32 s{s}, 0x{m & 0xffffffff:x}")
    A(f"s_mov_b32 s{s+1}, 0x{(m >> 32) & 0xffffffff:x}")
def set_exec(A, fn):
    m = lanemask(fn)
    A(f"s_mov_b32 exec_lo, 0x{m & 0xffffffff:x}"); A(f"s_mov_b32 exec_hi, 0x{m >> 32:x}")

def srd(A, s, plo, phi, size):
    A(f"s_mov_b32 s{s}, s{plo}")
    A(f"s_mov_b32 s{s+1}, s{phi}")
    A(f"s_mov_b32 s{s+2}, {size}")
    A(f"s_mov_b32 s{s+3}, 0x20000")

S_BR, S_RB, S_HG, S_WV, S_ROT = 3, 4, 5, 6, 7
S_T0, S_T1, S_T2, S_T3 = 8, 9, 10, 11
S_GROW, S_PC = 12, 13
S_RHO, S_CG = 14, 15
SRD_W, SRD_X, SRD_WS, SRD_DBG, SRD_WO, SRD_OUT, SRD_GW = 36, 40, 44, 48, 52, 56, 60
S_KW, S_KX, S_B1, S_B2, S_LW, S_LX, S_SO = 64, 65, 66, 67, 68, 69, 70
SM_PAR, SM_C0, SM_C1, SM_GE1, SM_GE2, SM_GE3 = 72, 74, 76, 78, 80, 82
S_C1 = 84
S_U0 = 88; S_U1 = 89
S_WPB, S_WPA = 86, 87
S_NON = 16
V_WOFF = 10
V_XOFF = 15
V_WRD, V_WRD2, V_XRD0, V_XRD1 = 19, 20, 21, 22
V_LANE = 23
V_INIT = 24
V_G = 28
V_P2 = 30
V_POLL = 252
V_NON = 250
V_KACC, V_VACC, V_QACC = 32, 72, 112
V_WF = 152
V_M = 232
WSD = f"s[{SRD_WS}:{SRD_WS+3}]"
DBGD = f"s[{SRD_DBG}:{SRD_DBG+3}]"
sm = lambda s: f"s[{s}:{s+1}]"

class Lbl:
    n = 0
def newlbl(p):
    Lbl.n += 1
    return f"L{p}{Lbl.n}"

def poll(A, vm, tag, load, check, pre_wait=True):
    lo, ok = newlbl("pl"), newlbl("pk")
    if pre_wait: vm.wait(A, tag)
    A(f"s_mov_b32 s{S_PC}, 0")
    A(f"{lo}:")
    check()
    A(f"s_cbranch_scc1 {ok}")
    A(f"s_add_u32 s{S_PC}, s{S_PC}, 1")
    A(f"s_cmp_ge_u32 s{S_PC}, {POLL_LIM}")
    A(f"s_cbranch_scc1 {ok}")
    A("s_sleep 1")
    for l in (load if isinstance(load, list) else [load]): A(l)
    A("s_waitcnt vmcnt(0)")
    A(f"s_branch {lo}")
    A(f"{ok}:")
    A.flush_hazards()

def k1_main(A, vm, br):
    isA = br == 'A'
    def kacc(rt, t): return (V_KACC + 8 * t + 4 * rt) if isA else (V_KACC + 20 * rt + 4 * t)
    def vacc(rt, t): return V_VACC + 8 * t + 4 * rt
    def qacc(rt, t): return V_QACC + 20 * rt + 4 * t
    def xfrag(P, rt): return ar((2 * P + rt) * 4, 4)
    def wf(hf, c): return V_WF + 40 * hf + 4 * c

    def dma_slot(sig):
        out = []
        buf = sig % 4
        if sig < 10:
            out.append(f"s_add_u32 s{S_SO}, s{S_KW}, s{S_B1}")
            out.append(f"s_add_u32 m0, s{S_LW}, {buf * 20480}")
            for i in range(4):
                out.append((f"buffer_load_dwordx4 v{V_WOFF+i}, s[{SRD_W}:{SRD_W+3}], s{S_SO} offen offset:{1024*i} lds", f"s{sig}"))
            out.append(f"s_add_u32 m0, s{S_LW}, {buf * 20480 + 4096}")
            out.append((f"buffer_load_dwordx4 v{V_WOFF+4}, s[{SRD_W}:{SRD_W+3}], s{S_SO} offen lds", f"s{sig}"))
            out.append(f"s_add_u32 m0, s{S_LX}, {buf * 16384}")
            for i in range(4):
                out.append((f"buffer_load_dwordx4 v{V_XOFF+i}, s[{SRD_X}:{SRD_X+3}], s{S_KX} offen offset:{1024*i} lds", f"s{sig}"))
            out.append(f"s_add_u32 s{S_KW}, s{S_KW}, 245760")
            out.append(f"s_cmp_eq_u32 s{S_KW}, 2457600")
            out.append(f"s_cselect_b32 s{S_KW}, 0, s{S_KW}")
            out.append(f"s_add_u32 s{S_KX}, s{S_KX}, 128")
            out.append(f"s_cmp_eq_u32 s{S_KX}, 1280")
            out.append(f"s_cselect_b32 s{S_KX}, 0, s{S_KX}")
        else:
            out.append(f"s_add_u32 s{S_SO}, s{S_KW}, s{S_B2}")
            out.append(f"s_add_u32 m0, s{S_LW}, {buf * 20480}")
            for i in range(4):
                out.append((f"buffer_load_dwordx4 v{V_WOFF+i}, s[{SRD_W}:{SRD_W+3}], s{S_SO} offen offset:{1024*i} lds", f"s{sig}"))
            out.append(f"s_add_u32 m0, s{S_LW}, {buf * 20480 + 4096}")
            out.append((f"buffer_load_dwordx4 v{V_WOFF+4}, s[{SRD_W}:{SRD_W+3}], s{S_SO} offen lds", f"s{sig}"))
            out.append(f"s_add_u32 s{S_KW}, s{S_KW}, 491520")
            out.append(f"s_cmp_ge_u32 s{S_KW}, 2457600")
            out.append(f"s_cselect_b32 s{S_T0}, 2457600, 0")
            out.append(f"s_sub_u32 s{S_KW}, s{S_KW}, s{S_T0}")
        if sig == 9:
            out.append(f"s_lshr_b32 s{S_T0}, s{S_WV}, 1")
            out.append(f"s_mul_i32 s{S_T0}, s{S_T0}, 245760")
            out.append(f"s_add_u32 s{S_KW}, s{S_KW}, s{S_T0}")
            out.append(f"s_cmp_ge_u32 s{S_KW}, 2457600")
            out.append(f"s_cselect_b32 s{S_T0}, 2457600, 0")
            out.append(f"s_sub_u32 s{S_KW}, s{S_KW}, s{S_T0}")
        return out

    def emit_list(lst):
        for x in lst:
            if isinstance(x, tuple):
                A(x[0]); vm.issue(x[1])
            else:
                A(x)

    def reads(sig, hf):
        out = []
        buf = sig % 4
        vb = V_WRD if buf < 2 else V_WRD2
        bo = (buf % 2) * 20480
        if sig < 10:
            P = 2 * sig + hf
            for rt in range(2):
                out.append(f"ds_read_b128 {xfrag(P, rt)}, v{V_XRD0 + hf} offset:{buf * 16384 + rt * 2048}")
        for c in range(10):
            img = 2 * hf + c // 5
            t = c % 5
            for h in range(2):
                out.append(f"ds_read_b64_tr_b16 {vr(wf(hf, c) + 2 * h, 2)}, v{vb} offset:{bo + img * 5120 + h * 1280 + 32 * t}")
        return out

    def mfmas(sig, hf, rt_major=False):
        out = []
        order = [(c, rt) for c in range(10) for rt in range(2)]
        if rt_major: order = [(c, rt) for rt in range(2) for c in range(10)]
        for c, rt in order:
            t = c % 5
            W = vr(wf(hf, c), 4)
            if sig < 10:
                P = 2 * sig + hf
                X = xfrag(P, rt)
                first = (P == 0)
                if c < 5:
                    acc = vr(kacc(rt, t), 4)
                    C = acc if not first else (vr(V_INIT, 4) if isA else "0")
                    if isA: out.append(f"v_mfma_f32_16x16x32_bf16 {acc}, {X}, {W}, {C}")
                    else:   out.append(f"v_mfma_f32_16x16x32_bf16 {acc}, {W}, {X}, {C}")
                else:
                    acc = vr(vacc(rt, t), 4)
                    C = acc if not first else "0"
                    out.append(f"v_mfma_f32_16x16x32_bf16 {acc}, {X}, {W}, {C}")
            else:
                P = 4 * (sig - 10) + 2 * hf + c // 5
                X = xfrag(P, rt)
                acc = vr(qacc(rt, t), 4)
                first = (P == 0)
                C = acc if not first else (vr(V_INIT, 4) if isA else "0")
                out.append(f"v_mfma_f32_16x16x32_bf16 {acc}, {W}, {X}, {C}")
        return out
    return dict(dma_slot=dma_slot, emit_list=emit_list, reads=reads, mfmas=mfmas,
                kacc=kacc, vacc=vacc, qacc=qacc, xfrag=xfrag)

def gen_k1(A):
    A(f".globl {K1}\n.p2align 8\n.type {K1},@function\n{K1}:")
    A("s_cmp_ge_u32 s2, 256")
    A("s_cbranch_scc1 L1_end")
    ts(A, "start")
    if TS and TSDBG >= 0:
        A("s_memrealtime s[98:99]"); A("s_waitcnt lgkmcnt(0)"); A("v_writelane_b32 v254, s98, 0")
    A("s_load_dwordx16 s[16:31], s[0:1], 0")
    A("s_load_dwordx4 s[32:35], s[0:1], 64")
    A(f"s_and_b32 s{S_BR}, s2, 1")
    A(f"s_lshr_b32 s{S_T0}, s2, 1"); A(f"s_and_b32 s{S_T0}, s{S_T0}, 1")
    A(f"s_lshr_b32 s{S_T1}, s2, 2"); A(f"s_and_b32 s{S_T1}, s{S_T1}, 1")
    A(f"s_lshr_b32 s{S_T2}, s2, 3")
    A(f"s_lshl_b32 s{S_RHO}, s{S_T1}, 1"); A(f"s_add_u32 s{S_RHO}, s{S_RHO}, s{S_BR}"); A(f"s_lshl_b32 s{S_RHO}, s{S_RHO}, 2")
    A(f"s_lshl_b32 s{S_T3}, s{S_T0}, 4"); A(f"s_add_u32 s{S_RHO}, s{S_RHO}, s{S_T3}")
    A(f"s_and_b32 s{S_T3}, s{S_T2}, 3"); A(f"s_add_u32 s{S_RHO}, s{S_RHO}, s{S_T3}")
    A(f"s_lshr_b32 s{S_CG}, s{S_T2}, 2")
    A(f"s_and_b32 s{S_T3}, s{S_T2}, 7")
    A(f"s_lshl_b32 s{S_RB}, s{S_T0}, 3"); A(f"s_add_u32 s{S_RB}, s{S_RB}, s{S_T3}")
    A(f"s_lshr_b32 s{S_T2}, s{S_T2}, 3")
    A(f"s_lshl_b32 s{S_HG}, s{S_T1}, 2"); A(f"s_add_u32 s{S_HG}, s{S_HG}, s{S_T2}")
    ROTM = _arg('rot', 1)
    def rotf(r, h):
        if ROTM == 0: return 0
        if ROTM == 1: return (r + (5 * h) // 2) % 10
        if ROTM == 2: return 5 * (r & 1)
        if ROTM == 3: return r
        if ROTM == 4: return (20 - r - h) % 10
        if ROTM == 5: return (20 - 2 * r - 2 * h) % 10
        if ROTM == 6: return (5 * (h & 1) + 2 * (r & 1)) % 10
        if ROTM == 7: return (r // 2 + 5 * (h & 1)) % 10
        if ROTM == 8: return (r + h) % 10
        if ROTM == 9: return (3 * r + (5 * h) // 2) % 10
    tab = 0
    for j in range(32): tab |= rotf(j & 7, j >> 3) << (4 * j)
    w32 = [(tab >> (32 * i)) & 0xffffffff for i in range(4)]
    A(f"s_lshr_b32 s{S_T2}, s2, 3")
    A(f"s_lshr_b32 s{S_T0}, s{S_T2}, 3")
    A(f"s_mov_b32 s{S_ROT}, 0x{w32[0]:x}")
    for i in range(1, 4):
        A(f"s_cmp_eq_u32 s{S_T0}, {i}"); A(f"s_cselect_b32 s{S_ROT}, 0x{w32[i]:x}, s{S_ROT}")
    A(f"s_lshl_b32 s{S_T3}, s{S_T3}, 2"); A(f"s_lshr_b32 s{S_ROT}, s{S_ROT}, s{S_T3}"); A(f"s_and_b32 s{S_ROT}, s{S_ROT}, 15")
    A(f"v_lshrrev_b32 v1, 6, v0")
    A(f"v_and_b32 v{V_LANE}, 63, v0")
    A(f"v_readfirstlane_b32 s{S_WV}, v1")
    for i in range(5):
        A(f"v_add_u32 v2, {64*i}, v{V_LANE}")
        A("v_mul_u32_u24 v3, 6554, v2"); A("v_lshrrev_b32 v3, 16, v3")
        A("v_mul_u32_u24 v4, 10, v3"); A("v_sub_u32 v4, v2, v4")
        A("v_and_b32 v5, 0x13, v3"); A("v_bfe_u32 v6, v3, 2, 1"); A("v_lshl_or_b32 v5, v6, 3, v5")
        A("v_bfe_u32 v6, v3, 3, 1"); A("v_lshl_or_b32 v5, v6, 2, v5")
        A("v_mul_u32_u24 v5, 3840, v5")
        A(f"v_lshl_add_u32 v{V_WOFF+i}, v4, 4, v5")
        if 0 < i < 4: A(f"v_subrev_u32 v{V_WOFF+i}, {1024*i}, v{V_WOFF+i}")
    A(f"s_lshl_b32 s{S_T0}, s{S_RB}, 7"); A(f"s_lshl_b32 s{S_T1}, s{S_WV}, 5"); A(f"s_add_u32 s{S_T0}, s{S_T0}, s{S_T1}")
    A(f"v_lshrrev_b32 v2, 3, v{V_LANE}")
    A(f"v_add_u32 v2, s{S_T0}, v2")
    A("v_mul_u32_u24 v2, 1280, v2")
    A(f"v_and_b32 v3, 7, v{V_LANE}"); A(f"v_lshrrev_b32 v4, 4, v{V_LANE}"); A("v_xor_b32 v3, v3, v4")
    A("v_xor_b32 v4, 4, v3")
    for i in range(4):
        A(f"v_lshl_add_u32 v{V_XOFF+i}, v{3 + (i & 1)}, 4, v2")
        if i: A(f"v_add_u32 v{V_XOFF+i}, {i * (10240 - 1024)}, v{V_XOFF+i}")
    A(f"v_lshrrev_b32 v2, 4, v{V_LANE}")
    A(f"v_bfe_u32 v3, v{V_LANE}, 2, 2")
    A(f"v_and_b32 v4, 3, v{V_LANE}")
    A("v_lshrrev_b32 v5, 1, v2"); A("v_lshl_add_u32 v5, v5, 4, v3")
    A("v_and_b32 v6, 1, v2"); A("v_lshl_add_u32 v5, v6, 2, v5")
    A("v_mul_u32_u24 v5, 160, v5")
    A(f"v_lshl_add_u32 v{V_WRD}, v4, 3, v5")
    A(f"v_add_u32 v{V_WRD2}, 40960, v{V_WRD}")
    A(f"v_and_b32 v3, 15, v{V_LANE}")
    A("v_bfe_u32 v4, v3, 1, 3"); A("v_xor_b32 v4, v4, v2")
    A("v_lshlrev_b32 v4, 4, v4"); A("v_lshl_add_u32 v4, v3, 7, v4")
    A(f"s_lshl_b32 s{S_T1}, s{S_WV}, 12"); A(f"s_add_u32 s{S_LX}, s{S_T1}, {L_X}")
    A(f"v_add_u32 v{V_XRD0}, s{S_LX}, v4")
    A(f"v_xor_b32 v{V_XRD1}, 64, v{V_XRD0}")
    A(f"s_mul_i32 s{S_LW}, s{S_WV}, 5120")
    A(f"v_lshlrev_b32 v{V_P2}, 4, v{V_LANE}")
    A(f"s_mul_i32 s{S_KW}, s{S_ROT}, 245760")
    A(f"s_lshl_b32 s{S_KX}, s{S_ROT}, 7")
    A(f"s_mul_i32 s{S_T0}, s{S_HG}, 160")
    A(f"s_lshr_b32 s{S_T1}, s{S_WV}, 1"); A(f"s_mul_i32 s{S_T1}, s{S_T1}, 122880")
    A(f"s_and_b32 s{S_T2}, s{S_WV}, 1"); A(f"s_mul_i32 s{S_T3}, s{S_T2}, 1280")
    A(f"s_add_u32 s{S_B1}, s{S_T0}, s{S_T1}"); A(f"s_add_u32 s{S_B1}, s{S_B1}, s{S_T3}"); A(f"s_add_u32 s{S_B1}, s{S_B1}, 1280")
    A(f"s_mul_i32 s{S_T3}, s{S_T2}, 122880"); A(f"s_add_u32 s{S_B2}, s{S_T0}, s{S_T3}")
    A(f"v_mov_b32 v{V_INIT}, 0x{f2u(1.0 + EPS):x}")
    for i in range(1, 4): A(f"v_mov_b32 v{V_INIT+i}, v{V_INIT}")
    A(f"s_lshl_b32 s{S_T0}, s{S_BR}, 3"); A(f"s_add_u32 s{S_T0}, s{S_T0}, s{S_HG}")
    A(f"s_lshl_b32 s{S_GROW}, s{S_T0}, 3"); A(f"s_lshl_b32 s{S_T1}, s{S_WV}, 1"); A(f"s_add_u32 s{S_GROW}, s{S_GROW}, s{S_T1}")
    A(f"s_lshl_b32 s{S_T1}, s{S_RB}, 7"); A(f"s_add_u32 s{S_GROW}, s{S_GROW}, s{S_T1}")
    A(f"v_and_b32 v7, 31, v{V_LANE}"); A("v_lshlrev_b32 v7, 4, v7")
    A(f"v_lshrrev_b32 v8, 5, v{V_LANE}"); A("v_mul_u32_u24 v8, 1280, v8"); A("v_add_u32 v8, v8, v7")
    A("v_cmp_gt_u32 vcc, 256, v7"); A("v_mov_b32 v9, 0x7000000"); A("v_cndmask_b32 v9, v9, v8, vcc")
    A(f"s_mul_i32 s96, s{S_GROW}, 1280")
    ts(A, "addr_done")
    A("s_waitcnt lgkmcnt(0)")
    ts(A, "karg")
    A(f"s_cmp_eq_u32 s{S_BR}, 0")
    A(f"s_cselect_b32 s{SRD_W}, s18, s24"); A(f"s_cselect_b32 s{SRD_W+1}, s19, s25")
    A(f"s_mov_b32 s{SRD_W+2}, 2457600"); A(f"s_mov_b32 s{SRD_W+3}, 0x20000")
    srd(A, SRD_X, 16, 17, 2621440)
    srd(A, SRD_WS, 34, 35, WS_SIZE)
    srd(A, SRD_DBG, 32, 33, 256)
    srd(A, SRD_GW, 28, 29, 1280)
    srd(A, SRD_OUT, 30, 31, 2621440)
    A("s_cbranch_scc0 L1_B")
    n0 = TSt.n; nm0 = list(TSt.names)
    k1_branch(A, 'A')
    ts_reset("K1A")
    A("L1_B:")
    A.hist = []
    TSt.n = n0; TSt.names = nm0
    k1_branch(A, 'B')
    ts_reset("K1B")
    A("L1_end:")
    A("s_endpgm")

def phi_pack_pairs(A, pairs, tmp, G=4):
    n = len(pairs)
    for g0 in range(0, n, G):
        grp = pairs[g0:g0 + G]
        for k, (s, d) in enumerate(grp):
            t = tmp + 2 * k
            A(f"v_pk_fma_f32 {vr(t,2)}, {vr(s,2)}, s[{S_C1}:{S_C1+1}], {vr(V_M,2)}")
        for k, (s, d) in enumerate(grp):
            t = tmp + 2 * k
            A(f"v_exp_f32_e64 v{t}, v{t} clamp")
            A(f"v_exp_f32_e64 v{t+1}, v{t+1} clamp")
        for k, (s, d) in enumerate(grp):
            t = tmp + 2 * k
            A(f"v_pk_add_f32 {vr(t,2)}, {vr(t,2)}, {vr(V_M+2,2)}")
        for k, (s, d) in enumerate(grp):
            t = tmp + 2 * k
            A(f"v_max_f32 v{t}, v{s}, v{t}")
            A(f"v_max_f32 v{t+1}, v{s+1}, v{t+1}")
        for k, (s, d) in enumerate(grp):
            t = tmp + 2 * k
            A(f"v_cvt_pk_bf16_f32 v{d}, v{t}, v{t+1}")

def unit_params(A):
    A(f"s_cmp_ge_u32 s2, 100"); A(f"s_cselect_b32 s91, 1, 0")
    A(f"s_mul_i32 s{S_T0}, s91, 100"); A(f"s_sub_u32 s{S_T0}, s2, s{S_T0}")
    A(f"s_mul_i32 s92, s{S_T0}, 205"); A(f"s_lshr_b32 s92, s92, 10")
    A(f"s_mul_i32 s{S_T1}, s92, 5"); A(f"s_sub_u32 s93, s{S_T0}, s{S_T1}")
    A(f"s_cmp_ge_u32 s2, 200"); A(f"s_cselect_b32 s94, 0x4000000, 0")

def unit_dma(A, vm):
    VU = V_M + 6
    unit_params(A)
    A(f"s_cmp_eq_u32 s91, 0")
    A(f"s_cselect_b32 s{SRD_WO}, s20, s26"); A(f"s_cselect_b32 s{SRD_WO+1}, s21, s27")
    A(f"s_mov_b32 s{SRD_WO+2}, 819200"); A(f"s_mov_b32 s{SRD_WO+3}, 0x20000")
    A(f"v_lshrrev_b32 v2, 4, v{V_LANE}")
    A(f"v_and_b32 v3, 15, v{V_LANE}")
    A(f"v_lshlrev_b32 v4, 1, v2")
    A(f"v_xor_b32 v3, v3, v4")
    A(f"s_and_b32 s{S_T0}, s{S_WV}, 1")
    A(f"s_lshl_b32 s{S_T0}, s{S_T0}, 3")
    A(f"v_xor_b32 v3, s{S_T0}, v3")
    A(f"v_mul_u32_u24 v2, 1280, v2")
    A(f"v_lshl_add_u32 v{VU}, v3, 4, v2")
    A(f"v_mul_u32_u24 v2, 19, v2")
    A(f"v_add_u32 v{VU+1}, v{VU}, v2")
    A("s_mul_i32 s95, s92, 52"); A("s_lshr_b32 s95, s95, 8")
    A("s_mul_i32 s96, s95, 5"); A("s_sub_u32 s96, s92, s96")
    for h in range(2):
        A(f"s_lshl_b32 s{S_T1}, s95, 1")
        A(f"s_cmp_ge_u32 s96, 2"); A(f"s_cselect_b32 s{S_T2}, 1, 0")
        A(f"s_lshl_b32 s{S_T3}, s{S_T2}, 1"); A(f"s_sub_u32 s{S_T3}, s96, s{S_T3}")
        A(f"s_lshl_b32 s{S_T3}, s{S_T3}, 1"); A(f"s_add_u32 s{S_T3}, s{S_T3}, {h}")
        A(f"s_cmp_eq_u32 s96, 4"); A(f"s_cselect_b32 s{S_T2}, {h}, s{S_T2}"); A(f"s_cselect_b32 s{S_T3}, 4, s{S_T3}")
        A(f"s_add_u32 s{S_T1}, s{S_T1}, s{S_T2}")
        A(f"s_mul_i32 s{S_T1}, s{S_T1}, 80")
        A(f"s_lshl_b32 s97, s{S_WV}, 2")
        A(f"s_lshl_b32 s98, s{S_T3}, 4"); A("s_add_u32 s98, s98, s97")
        A(f"s_mul_i32 s99, s{S_T3}, 20"); A("s_add_u32 s99, s99, s97")
        A(f"s_add_u32 s97, s{S_WV}, 16")
        A(f"s_cmp_eq_u32 s{S_T3}, 4"); A("s_cselect_b32 s99, s97, s99")
        A(f"s_cselect_b32 s97, 1, 0")
        A("s_cmp_eq_u32 s91, 0"); A("s_cselect_b32 s98, s99, s98"); A("s_cselect_b32 s97, s97, 0")
        A(f"s_add_u32 s{S_T1}, s{S_T1}, s98")
        A(f"s_mul_i32 s{S_T1}, s{S_T1}, 1280"); A(f"s_lshl_b32 s{S_T2}, s93, 8"); A(f"s_add_u32 s{S_T1}, s{S_T1}, s{S_T2}")
        A(f"s_add_u32 s{S_T1}, s{S_T1}, s94")
        A("s_cmp_eq_u32 s97, 1"); A("s_cselect_b64 vcc, -1, 0")
        A(f"v_cndmask_b32 v{VU+2}, v{VU}, v{VU+1}, vcc")
        A(f"s_lshl_b32 s{S_T2}, s{S_WV}, 11")
        A(f"s_add_u32 m0, s{S_T2}, {L_UNIT + 1024*h}")
        A(f"buffer_load_dwordx4 v{VU+2}, s[{SRD_WO}:{SRD_WO+3}], s{S_T1} offen lds"); vm.issue('wu')

def unit_store(A, vm):
    R = V_M + 8
    unit_params(A)
    A(f"v_lshrrev_b32 v2, 4, v{V_LANE}")
    A(f"v_bfe_u32 v3, v{V_LANE}, 2, 2")
    A(f"v_and_b32 v4, 3, v{V_LANE}")
    A("v_lshl_add_u32 v5, v2, 3, v3"); A("v_lshlrev_b32 v5, 8, v5")
    A("v_and_b32 v6, 1, v4"); A("v_lshl_add_u32 v5, v6, 3, v5")
    A("v_lshlrev_b32 v6, 1, v3"); A("v_and_b32 v7, 1, v2"); A("v_lshl_or_b32 v6, v7, 3, v6")
    A("v_lshrrev_b32 v7, 1, v4"); A("v_or_b32 v6, v6, v7")
    A(f"s_lshl_b32 s{S_T0}, s{S_WV}, 2")
    A(f"v_xor_b32 v7, s{S_T0}, v6"); A("v_lshl_add_u32 v8, v7, 4, v5")
    A("v_xor_b32 v7, 2, v7"); A("v_lshl_add_u32 v9, v7, 4, v5")
    A(f"v_add_u32 v8, {L_UNIT}, v8"); A(f"v_add_u32 v9, {L_UNIT}, v9")
    for e in range(2):
        for h in range(2):
            A(f"ds_read_b64_tr_b16 {vr(R + 4*e + 2*h, 2)}, v{8+e} offset:{1024*h}")
    for e in range(2):
        A(f"s_lshl_b32 s{S_T0}, s93, 3"); A(f"s_lshl_b32 s{S_T1}, s{S_WV}, 1"); A(f"s_add_u32 s{S_T0}, s{S_T0}, s{S_T1}")
        if e: A(f"s_add_u32 s{S_T0}, s{S_T0}, 1")
        A(f"s_mul_i32 s{S_T1}, s{S_T0}, 52"); A(f"s_lshr_b32 s{S_T1}, s{S_T1}, 8")
        A(f"s_mul_i32 s{S_T2}, s{S_T1}, 5"); A(f"s_sub_u32 s{S_T2}, s{S_T0}, s{S_T2}")
        A(f"s_lshl_b32 s{S_T3}, s91, 3"); A(f"s_add_u32 s{S_T1}, s{S_T1}, s{S_T3}")
        A(f"s_mul_i32 s{S_T1}, s{S_T1}, 20"); A(f"s_add_u32 s{S_T1}, s{S_T1}, s92")
        A(f"s_mul_i32 s{S_T1}, s{S_T1}, 5"); A(f"s_add_u32 s{S_T1}, s{S_T1}, s{S_T2}")
        A(f"s_lshl_b32 s{S_T1}, s{S_T1}, 10"); A(f"s_add_u32 s{S_T1}, s{S_T1}, {WS_WP}")
        A(f"s_add_u32 s{S_T1}, s{S_T1}, s94")
        if e == 0: A("s_waitcnt lgkmcnt(0)")
        A(f"buffer_store_dwordx4 {vr(R + 4*e, 4)}, v{V_P2}, {WSD}, s{S_T1} offen sc1"); vm.issue('wus')

def flag_store(A, saddr):
    A("v_mov_b32 v3, 0")
    A("s_mov_b64 exec, 1")
    A(f"buffer_store_dwordx2 {vr(V_NON,2)}, v3, {WSD}, s{saddr} offen sc1")
    A("s_mov_b64 exec, -1")

def check_flags(A, mask=None):
    def f():
        A(f"v_cmp_eq_u64 vcc, s[{S_NON}:{S_NON+1}], {vr(V_POLL,2)}")
        if mask is None:
            A("s_nop 0")
            A("s_cmp_eq_u64 vcc, -1")
        else:
            set_mask(A, 94, mask)
            A("s_and_b64 vcc, vcc, s[94:95]")
            A("s_cmp_eq_u64 vcc, s[94:95]")
    return f

def wg_id_of(A, vdst, vbr, vrb, vhg, t0, t1):
    A(f"v_lshrrev_b32 v{t0}, 3, v{vrb}"); A(f"v_lshl_add_u32 v{vdst}, v{t0}, 1, v{vbr}")
    A(f"v_lshrrev_b32 v{t0}, 2, v{vhg}"); A(f"v_lshl_add_u32 v{vdst}, v{t0}, 2, v{vdst}")
    A(f"v_and_b32 v{t0}, 3, v{vhg}"); A(f"v_and_b32 v{t1}, 7, v{vrb}"); A(f"v_lshl_add_u32 v{t0}, v{t0}, 3, v{t1}")
    A(f"v_lshl_add_u32 v{vdst}, v{t0}, 3, v{vdst}")

V_EDA = 249
def ed_poll_addr(A):
    l = V_LANE
    A(f"v_cmp_le_u32 vcc, 10, v{l}"); A("v_cndmask_b32 v2, 0, 1, vcc" if False else "v_cndmask_b32_e64 v2, 0, 1, vcc")
    A(f"v_mul_u32_u24 v3, 10, v2"); A(f"v_sub_u32 v3, v{l}, v3")
    A("v_lshrrev_b32 v4, 1, v3"); A(f"s_mul_i32 s{S_T0}, s{S_WV}, 5"); A(f"v_add_u32 v4, s{S_T0}, v4")
    A("v_mul_u32_u24 v4, 5, v4"); A("v_mul_u32_u24 v5, 100, v2"); A("v_add_u32 v4, v4, v5")
    A(f"s_mul_i32 s{S_T0}, s{S_CG}, 80"); A(f"s_lshr_b32 s{S_T1}, s{S_T0}, 7"); A(f"s_add_u32 s{S_T0}, s{S_T0}, 79"); A(f"s_lshr_b32 s{S_T0}, s{S_T0}, 7")
    A("v_and_b32 v3, 1, v3"); A("v_cmp_eq_u32 vcc, 1, v3")
    A(f"v_mov_b32 v5, s{S_T1}"); A(f"v_mov_b32 v6, s{S_T0}"); A("v_cndmask_b32 v5, v5, v6, vcc")
    A("v_add_u32 v4, v4, v5")
    A(f"s_lshl_b32 s{S_T0}, s{S_WV}, 2"); A(f"s_sub_u32 s{S_T0}, s{S_T0}, 20"); A(f"v_add_u32 v2, s{S_T0}, v{l}")
    A("v_and_b32 v2, 15, v2")
    A("v_lshrrev_b32 v3, 3, v2"); A("v_and_b32 v2, 7, v2"); A(f"v_mov_b32 v5, s{S_RB}")
    wg_id_of(A, 6, 3, 5, 2, 7, 8)
    A(f"v_cmp_le_u32 vcc, 20, v{l}"); A("v_cndmask_b32 v4, v4, v6, vcc")
    A(f"v_subrev_u32 v5, 24, v{l}"); A("v_and_b32 v5, 15, v5"); A("v_mov_b32 v3, 0"); A(f"v_mov_b32 v2, s{S_HG}")
    wg_id_of(A, 6, 3, 5, 2, 7, 8)
    A(f"v_cmp_le_u32 vcc, 24, v{l}"); A("v_cndmask_b32 v4, v4, v6, vcc")
    A(f"v_lshlrev_b32 v{V_EDA}, 7, v4")
ED_LD = f"buffer_load_dwordx2 {vr(252,2)}, v{V_EDA}, {WSD}, s71 offen sc1"

def k1_branch(A, br):
    isA = br == 'A'
    vm = VM()
    M = k1_main(A, vm, br)
    emit_list, dma_slot, reads, mfmas = (M[k] for k in ('emit_list', 'dma_slot', 'reads', 'mfmas'))
    L = f"L1{br}_"
    S_TAG[0] = br
    P2 = Phase2(A, vm)
    WQ = _arg('wq', 3)
    def wq(sig, hf):
        if sig < 10: return []
        P2.allow = min(50, 24 + 4 * (2 * (sig - 10) + hf))
        return P2.wgroups(WQ)
    GX, GW = V_QACC, V_QACC + 12
    GWD = f"s[{SRD_GW}:{SRD_GW+3}]"; XD = f"s[{SRD_X}:{SRD_X+3}]"
    def gate_loads():
        for j in range(3):
            A(f"buffer_load_dwordx4 {vr(GX+4*j,4)}, v{8 if j < 2 else 9}, {XD}, s96 offen offset:{512*j}"); vm.issue('gx')
            A(f"buffer_load_dwordx4 {vr(GW+4*j,4)}, v7, {GWD}, 0 offen offset:{512*j}"); vm.issue('gx')
    def gate_compute():
        vm.wait(A, 'gx')
        acc = 2
        for j in range(3):
            for k in range(4):
                C = "0" if (j == 0 and k == 0) else f"v{acc}"
                A(f"v_dot2_f32_bf16 v{acc}, v{GX+4*j+k}, v{GW+4*j+k}, {C}")
        A("s_nop 3")
        for sh in (1, 2, 4, 8):
            A(f"v_add_f32_dpp v{acc}, v{acc}, v{acc} row_shr:{sh} row_mask:0xf bank_mask:0xf bound_ctrl:0")
        A(f"v_add_f32_dpp v{acc}, v{acc}, v{acc} row_bcast:15 row_mask:0xa bank_mask:0xf")
        A(f"v_mul_f32 v{acc}, 0x{f2u(-LOG2E):x}, v{acc}")
        A(f"v_exp_f32 v{acc}, v{acc}")
        A(f"v_add_f32 v{acc}, 1.0, v{acc}")
        A(f"v_rcp_f32 v{acc}, v{acc}")
        A(f"v_lshrrev_b32 v3, 5, v{V_LANE}"); A("v_lshlrev_b32 v3, 2, v3")
        A(f"s_lshl_b32 s{S_T0}, s{S_GROW}, 5"); A(f"s_add_u32 s{S_T0}, s{S_T0}, {WS_GATE}")
        set_exec(A, lambda l: l in (31, 63))
        A(f"buffer_store_dword v{acc}, v3, {WSD}, s{S_T0} offen sc1"); vm.issue('gst')
        A("s_mov_b64 exec, -1")
    stream = []
    for sig in range(15):
        cur = []
        for x in dma_slot(sig):
            cur.append(x)
            if isinstance(x, tuple):
                stream.append((sig, cur)); cur = []
        if cur: stream[-1][1].extend(cur)
    spos = [0]
    def take(n, maxslot):
        out = []
        while n > 0 and spos[0] < len(stream) and stream[spos[0]][0] <= maxslot:
            out.append(stream[spos[0]][1]); spos[0] += 1; n -= 1
        return out
    for gi, g in enumerate(take(PRO_N, 3)):
        emit_list(g)
        if gi in (0, 8): ts(A, f"d{gi}")
    ts(A, "pro_issued")
    if isA:
        A(f"s_lshl_b32 s{S_T0}, s2, 2"); A(f"s_add_u32 s{S_T0}, s{S_T0}, s{S_WV}")
        A(f"s_cmp_lg_u32 s{S_T0}, 0"); A(f"s_cbranch_scc1 {L}nn")
        A("s_memrealtime s[98:99]")
        A("s_waitcnt lgkmcnt(0)")
        A("s_or_b32 s98, s98, 1"); A("s_or_b32 s99, s99, 0x80000000")
        A("v_mov_b32 v2, s98"); A("v_mov_b32 v3, s99"); A("v_mov_b32 v4, 0")
        A("s_mov_b64 exec, 1")
        A(f"buffer_store_dwordx2 v[2:3], v4, {DBGD}, 0 offen sc1")
        A("s_mov_b64 exec, -1")
        A(f"{L}nn:")
        A(f"s_cmp_lg_u32 s{S_WV}, 0"); A(f"s_cbranch_scc1 {L}nz")
        A(f"s_lshl_b32 s{S_T0}, s{S_HG}, 13"); A(f"s_lshl_b32 s{S_T1}, s{S_RB}, 9"); A(f"s_add_u32 s{S_T0}, s{S_T0}, s{S_T1}")
        A(f"s_add_u32 s{S_T0}, s{S_T0}, {WS_KV}")
        A("v_mov_b32 v2, 0"); A("v_mov_b32 v3, 0"); A("v_mov_b32 v4, 0"); A("v_mov_b32 v5, 0")
        A("s_mov_b32 exec_hi, 0")
        A(f"buffer_store_dwordx4 v[2:5], v{V_P2}, {WSD}, s{S_T0} offen sc1")
        A("s_mov_b32 exec_hi, -1")
        A(f"{L}nz:")
        A(f"s_mov_b32 s{S_C1}, 0x{f2u(LOG2E):x}"); A(f"s_mov_b32 s{S_C1+1}, 0x{f2u(LOG2E):x}")
        A(f"v_mov_b32 v{V_M}, 0x{f2u(-(1.0+EPS)*LOG2E):x}"); A(f"v_mov_b32 v{V_M+1}, v{V_M}")
        A(f"v_mov_b32 v{V_M+2}, 0x{f2u(EPS):x}"); A(f"v_mov_b32 v{V_M+3}, v{V_M+2}")
    gate_loads()
    ed_poll_addr(A)
    vm.wait(A, 's0')
    A("s_barrier")
    ts(A, "s0_ready")
    emit_list(reads(0, 0))
    A("s_waitcnt lgkmcnt(0)")

    def phase2(mf, rd, groups, extra=()):
        n = len(mf)
        fill = list(extra) + list(rd)
        pos = {}
        for k, g in enumerate(groups):
            pos.setdefault(min(n - 1, (k * n) // max(1, len(groups)) + PH_OFF), []).append(g)
        fi = 0
        for i, m in enumerate(mf):
            A(m)
            used = 0
            for g in pos.get(i, []):
                emit_list(g); used += 2
            for _ in range(max(1, 3 - used)):
                if fi < len(fill):
                    emit_list([fill[fi]]); fi += 1
        emit_list(fill[fi:])

    def iteration(sig, also_wait=(), after_barrier=None, mid14=None):
        last = (sig == 14)
        q0 = Q_EARLY if sig < N_EARLY else Q0
        q1 = Q_EARLY if sig < N_EARLY else Q1
        phase2(mfmas(sig, 0), reads(sig, 1), take(q0, sig + 3) + wq(sig, 0))
        if not last:
            for g in take(100, sig + 1): emit_list(g)
            vm.wait(A, f's{sig+1}', *also_wait, lgkm=True)
            A("s_barrier")
            if after_barrier: after_barrier()
            phase2(mfmas(sig, 1), reads(sig + 1, 0), take(q1, sig + 4) + wq(sig, 1))
            A("s_waitcnt lgkmcnt(0)")
        else:
            A("s_waitcnt lgkmcnt(0)")
            mid14()
            for m in mfmas(sig, 1, rt_major=True): A(m)

    NON_LD = f"buffer_load_dwordx2 {vr(V_POLL,2)}, v{V_M+4}, {DBGD}, 0 offen sc1"
    for sig in range(10):
        if sig == 2:
            iteration(sig, also_wait=('wu',))
            unit_store(A, vm)
        elif sig == 4:
            def edflag():
                l = newlbl("w0")
                A(f"s_cmp_lg_u32 s{S_WV}, 0"); A(f"s_cbranch_scc1 {l}")
                A("s_lshl_b32 s90, s2, 7"); A(f"s_add_u32 s90, s90, {WS_FLG + FL_ED}")
                flag_store(A, 90)
                A(f"{l}:")
            iteration(sig, also_wait=('wus', 'gst'), after_barrier=edflag)
        else:
            iteration(sig)
        if sig == 0:
            unit_dma(A, vm)
        if sig == 1:
            gate_compute()
            A(f"v_mov_b32 v{V_M+4}, 0")
            A(NON_LD); vm.issue('non')
        if sig == 3:
            def chk():
                A(f"v_readfirstlane_b32 s{S_NON}, v{V_POLL}"); A(f"v_readfirstlane_b32 s{S_NON+1}, v{V_POLL+1}")
                A(f"s_cmp_lg_u32 s{S_NON}, 0"); A(f"s_cselect_b32 s90, s{S_NON+1}, 0"); A("s_cmp_lg_u32 s90, 0")
            poll(A, vm, 'non', NON_LD, chk)
            A(f"v_mov_b32 v{V_NON}, s{S_NON}"); A(f"v_mov_b32 v{V_NON+1}, s{S_NON+1}")
        if sig == 8:
            A(f"s_mov_b32 s71, {WS_FLG + FL_ED}")
            A(ED_LD); vm.issue('edp')
        if sig in (0, 1, 2, 4, 6, 8, 9): ts(A, f"it{sig}")
    poll(A, vm, 'edp', ED_LD, check_flags(A, lanemask(lambda l: l < (40 if isA else 24))))
    ts(A, "ed_ok")
    P2.setup_w()
    if isA:
        P2.allow = 24; P2.every = _arg('wmid', 8); A.filler = P2.wfill
        k1_A_mid(A, vm, M)
        A.filler = None; P2.every = WFILL
    else:   k1_B_mid(A, vm, M)
    ts(A, "mid")
    KVF_IT = _arg('kvfit', 13)
    for sig in range(10, 15):
        ab = None; aw = ()
        if isA and sig == KVF_IT:
            aw = ('kvat',)
            def ab():
                A(f"s_lshl_b32 s91, s{S_HG}, 2"); A(f"s_add_u32 s91, s91, s{S_WV}"); A("s_lshl_b32 s91, s91, 4"); A(f"s_add_u32 s91, s91, s{S_RB}")
                A("s_lshl_b32 s91, s91, 7"); A(f"s_add_u32 s91, s91, {WS_FLG + FL_KVD}")
                flag_store(A, 91); vm.issue('kvf')
        if (not isA) and sig == 12:
            def ab():
                l = newlbl("hf")
                A(f"s_cmp_lg_u32 s{S_WV}, 3"); A(f"s_cbranch_scc1 {l}")
                A(f"s_waitcnt vmcnt({len(vm.ops) - vm.halo_marker})")
                A(f"s_lshl_b32 s92, s{S_HG}, 4"); A(f"s_add_u32 s92, s92, s{S_RB}"); A("s_lshl_b32 s92, s92, 7"); A(f"s_add_u32 s92, s92, {WS_FLG + FL_HF}")
                flag_store(A, 92)
                A(f"{l}:")
        iteration(sig, also_wait=aw, after_barrier=ab, mid14=(lambda: (pre_tail_loads(A, vm, isA), P2.prep())))
        if sig == 11:
            gate_data_loads(A, vm)
        ts(A, f"it{sig}")
    P2.allow = 50
    if isA: k1_A_end(A, vm, M, P2)
    else:   k1_B_end(A, vm, M, P2)
    P2.run()
    ts(A, "end"); ts_store(A, SRD_WS)
    A("s_endpgm")

def gate_data_loads(A, vm):
    A(f"v_and_b32 v2, 15, v{V_LANE}")
    A("v_lshrrev_b32 v3, 1, v2"); A("v_lshlrev_b32 v3, 6, v3"); A("v_and_b32 v2, 1, v2"); A("v_lshl_add_u32 v3, v2, 2, v3")
    A(f"s_lshl_b32 s{S_T0}, s{S_RB}, 6"); A(f"s_lshl_b32 s{S_T1}, s{S_WV}, 4"); A(f"s_add_u32 s{S_T0}, s{S_T0}, s{S_T1}")
    A(f"s_lshl_b32 s{S_T0}, s{S_T0}, 6"); A(f"s_add_u32 s{S_T0}, s{S_T0}, {WS_GATE}")
    for rt in range(2):
        A(f"buffer_load_dword v{V_G+rt}, v3, {WSD}, s{S_T0} offen offset:{512*rt} sc1"); vm.issue('gl')

def pre_tail_loads(A, vm, isA):
    if isA:
        A(f"v_and_b32 v{V_M+5}, 15, v{V_LANE}"); A(f"v_lshlrev_b32 v{V_M+5}, 7, v{V_M+5}")
        A(f"s_lshl_b32 s{S_U0}, s{S_HG}, 2"); A(f"s_add_u32 s{S_U0}, s{S_U0}, s{S_WV}"); A(f"s_lshl_b32 s{S_U0}, s{S_U0}, 11")
        A(f"s_add_u32 s{S_U0}, s{S_U0}, {WS_FLG + FL_KVD}")
    else:
        A(f"s_lshl_b32 s{S_U0}, s{S_HG}, 4"); A(f"s_add_u32 s{S_U0}, s{S_U0}, s{S_RB}"); A(f"s_lshl_b32 s{S_U0}, s{S_U0}, 7")
        A(f"s_add_u32 s{S_U0}, s{S_U0}, {WS_FLG + FL_HF - 128}")
        A(f"v_mov_b32 v{V_M+5}, 0")
    A(KV_POLL()); vm.issue('kvp')
def KV_POLL():
    return f"buffer_load_dwordx2 {vr(V_POLL,2)}, v{V_M+5}, {WSD}, s{S_U0} offen sc1"

def gate_check(A, vm):
    vm.wait(A, 'gl')

def k1_A_mid(A, vm, M):
    L = "L1A_"
    TMP = V_QACC
    for t in range(5):
        b = V_VACC + 8 * t
        for k in range(4):
            A(f"v_cvt_pk_bf16_f32 v{b+k}, v{b+2*k}, v{b+2*k+1}")
    pairs = []
    for t in range(5):
        b = V_KACC + 8 * t
        for k in range(4):
            pairs.append((b + 2 * k, b + k))
    phi_pack_pairs(A, pairs, TMP)
    i_, g_ = 2, 3
    A(f"v_and_b32 v{i_}, 15, v{V_LANE}"); A(f"v_lshrrev_b32 v{g_}, 4, v{V_LANE}")
    A(f"s_lshl_b32 s{S_T0}, s{S_WV}, 6")
    A(f"v_lshl_add_u32 v4, v{g_}, 4, s{S_T0}")
    A(f"v_mul_u32_u24 v5, 272, v{i_}")
    A("v_add_u32 v5, v5, v4")
    A(f"v_add_u32 v6, {L_KREG}, v5")
    for t in range(5):
        A(f"ds_write_b128 v6, {vr(V_KACC + 8*t, 4)} offset:{t * 16 * 272}")
    for t in range(5):
        lo = (16 * t) // 20; hi = (16 * t + 15) // 20
        if lo == hi:
            A(f"v_add_u32 v7, {L_VREG + (16*t + lo) * 272}, v5")
            A(f"ds_write_b128 v7, {vr(V_VACC + 8*t, 4)}")
        else:
            thr = hi * 20 - 16 * t
            A(f"v_cmp_le_u32 vcc, {thr}, v{i_}")
            A(f"v_mov_b32 v7, {L_VREG + (16*t + lo) * 272}")
            A(f"v_mov_b32 v8, {L_VREG + (16*t + hi) * 272}")
            A("v_cndmask_b32 v7, v7, v8, vcc")
            A("v_add_u32 v7, v7, v5")
            A(f"ds_write_b128 v7, {vr(V_VACC + 8*t, 4)}")
    A(f"v_mul_u32_u24 v7, {21*272}, v{i_}")
    A("v_add_u32 v7, v7, v4")
    A(f"v_add_u32 v7, {L_VREG + 20*272}, v7")
    for k in range(4): A(f"v_mov_b32 v{TMP+k}, 0x3f803f80")
    set_exec(A, lambda l: (l & 15) < 4)
    A(f"ds_write_b128 v7, {vr(TMP,4)}")
    A("s_mov_b64 exec, -1")
    A(f"s_mul_i32 s{S_T0}, s{S_WV}, {20*272}"); A(f"s_add_u32 s{S_T0}, s{S_T0}, {L_KREG}")
    A(f"s_mul_i32 s{S_T1}, s{S_WV}, {21*272}"); A(f"s_add_u32 s{S_T1}, s{S_T1}, {L_VREG}")
    A(f"v_mul_u32_u24 v5, 272, v{i_}")
    A(f"v_lshl_add_u32 v5, v{g_}, 4, v5")
    A(f"v_add_u32 v6, s{S_T0}, v5")
    A(f"v_add_u32 v7, s{S_T1}, v5")
    A("s_waitcnt lgkmcnt(0)")
    A("s_barrier")
    OP = V_KACC
    for ws in range(4):
        o = OP + 16 * ws
        A(f"ds_read_b128 {vr(o,4)}, v6 offset:{64*ws}")
        A(f"ds_read_b128 {vr(o+4,4)}, v6 offset:{64*ws + 16*272}")
        A(f"ds_read_b128 {vr(o+8,4)}, v7 offset:{64*ws}")
        A(f"ds_read_b128 {vr(o+12,4)}, v7 offset:{64*ws + 16*272}")
    T = V_QACC
    for ws in range(4):
        o = OP + 16 * ws
        A(f"s_waitcnt lgkmcnt({12 - 4*ws})")
        C = lambda k: ("0" if ws == 0 else vr(T + 4*k, 4))
        A(f"v_mfma_f32_16x16x32_bf16 {vr(T,4)}, {vr(o+8,4)}, {vr(o,4)}, {C(0)}")
        A(f"v_mfma_f32_16x16x32_bf16 {vr(T+4,4)}, {vr(o+12,4)}, {vr(o,4)}, {C(1)}")
        A(f"v_mfma_f32_16x16x32_bf16 {vr(T+8,4)}, {vr(o+8,4)}, {vr(o+4,4)}, {C(2)}")
        A(f"v_mfma_f32_16x16x32_bf16 {vr(T+12,4)}, {vr(o+12,4)}, {vr(o+4,4)}, {C(3)}")
    A(f"s_sub_u32 s{S_T0}, 4, s{S_WV}")
    A(f"s_add_u32 s{S_T1}, s{S_WV}, 1")
    A(f"s_lshl_b32 s{S_T2}, s{S_T0}, 4")
    A(f"s_lshl_b32 s{S_T3}, s{S_T1}, 4")
    A(f"s_mul_i32 s94, s{S_T0}, 320")
    A(f"v_lshrrev_b32 v4, 2, v{i_}")
    A(f"v_cmp_gt_u32 vcc, s{S_T0}, v4")
    A(f"v_mov_b32 v5, s{S_T3}"); A(f"v_mov_b32 v6, s{S_T2}")
    A("v_cndmask_b32 v5, v5, v6, vcc")
    A(f"v_mov_b32 v6, s94"); A("v_cndmask_b32 v6, v6, 0, vcc")
    A(f"v_lshl_add_u32 v6, v{i_}, 2, v6")
    AD = V_M + 6
    A(f"v_mad_u32_u24 v{AD}, v{g_}, v5, v6")
    A(f"v_lshlrev_b32 v7, 2, v5")
    for j in range(1, 4): A(f"v_add_u32 v{AD+j}, v{AD+j-1}, v7")
    A(f"v_lshl_add_u32 v8, v{g_}, 2, 16")
    A(f"v_mad_u32_u24 v{AD+4}, v8, v5, v6")
    for j in range(1, 4): A(f"v_add_u32 v{AD+4+j}, v{AD+4+j-1}, v5")
    A(f"s_mul_i32 s95, s{S_T0}, 336"); A(f"s_lshl_b32 s94, s{S_WV}, 4"); A(f"s_add_u32 s95, s95, s94")
    A(f"v_lshl_add_u32 v6, v{i_}, 2, s95")
    A(f"v_mad_u32_u24 v{AD+8}, v{g_}, s{S_T3}, v6")
    A(f"v_mad_u32_u24 v{AD+9}, v8, s{S_T3}, v6")
    A(f"s_lshl_b32 s{S_T0}, s{S_HG}, 2"); A(f"s_add_u32 s{S_T0}, s{S_T0}, s{S_WV}"); A(f"s_lshl_b32 s{S_T0}, s{S_T0}, 11")
    A(f"s_add_u32 s93, s{S_T0}, {WS_KV}")
    KB = 93
    A(f"s_lshl_b32 s94, s{S_T3}, 2")
    A(f"s_add_u32 s90, s{KB}, s94"); A(f"s_add_u32 s91, s90, s94"); A(f"s_add_u32 s92, s91, s94")
    A(f"s_add_u32 s96, s{KB}, s{S_T3}"); A(f"s_add_u32 s97, s96, s{S_T3}"); A(f"s_add_u32 s98, s97, s{S_T3}")
    ts(A, "mid_mfma")
    A.flush_hazards()
    def at(v, a, so):
        A(f"buffer_atomic_add_f32 v{v}, v{a}, {WSD}, s{so} offen"); vm.issue('kvat')
    for j in range(4): at(T+j, AD+j, KB)
    set_exec(A, lambda l: l < 32)
    at(T+4, AD+4, KB)
    set_exec(A, lambda l: l < 16)
    for j in range(1, 4): at(T+4+j, AD+4+j, KB)
    set_exec(A, lambda l: (l & 15) < 4)
    for j in range(4): at(T+8+j, AD+8, KB if j == 0 else 89 + j)
    set_exec(A, lambda l: (l & 15) < 4 and l < 32)
    at(T+12, AD+9, KB)
    set_exec(A, lambda l: l < 4)
    for j in range(1, 4): at(T+12+j, AD+9, 95 + j)
    A("s_mov_b64 exec, -1")
    A("s_nop 7")

def f_store_base(A, brv):
    A(f"s_lshl_b32 s{S_T0}, s{S_RB}, 3"); A(f"s_lshl_b32 s{S_T1}, s{S_WV}, 1"); A(f"s_add_u32 s{S_T0}, s{S_T0}, s{S_T1}")
    if brv: A(f"s_add_u32 s{S_T0}, s{S_T0}, 128")
    A(f"s_lshl_b32 s{S_T0}, s{S_T0}, 3"); A(f"s_add_u32 s{S_T0}, s{S_T0}, s{S_HG}")
    A(f"s_mul_i32 s{S_U0}, s{S_T0}, 2560")
    if WS_F: A(f"s_add_u32 s{S_U0}, s{S_U0}, {WS_F}")

def f_stores(A, vm, O, rt, V_L8):
    if rt: A(f"s_add_u32 s{S_SO}, s{S_U0}, 20480")
    else:  A(f"s_mov_b32 s{S_SO}, s{S_U0}")
    A(f"buffer_store_dwordx4 {vr(O,4)}, v{V_P2}, {WSD}, s{S_SO} offen sc1"); vm.issue('ost')
    A(f"buffer_store_dwordx4 {vr(O+4,4)}, v{V_P2}, {WSD}, s{S_SO} offen offset:1024 sc1"); vm.issue('ost')
    A(f"buffer_store_dwordx2 {vr(O+8,2)}, v{V_L8}, {WSD}, s{S_SO} offen offset:2048 sc1"); vm.issue('ost')

def k1_A_end(A, vm, M, P2):
    qacc = M['qacc']
    L = "L1A_"
    TMP = V_WF
    def phi_rt(rt):
        pairs = []
        for t_ in range(5):
            b = qacc(rt, t_)
            for k in range(2):
                pairs.append((b + 2 * k, V_QACC + 20 * rt + 2 * t_ + k))
        A.filler = P2.wfill
        phi_pack_pairs(A, pairs, TMP)
        A.filler = None
    t = V_KACC + 20
    i_, g16, r1, r2, big, g_ = t, t+1, t+2, t+3, t+4, t+5
    KO = V_KACC + 16
    A(f"v_and_b32 v{i_}, 15, v{V_LANE}")
    A(f"v_and_b32 v{g16}, 48, v{V_LANE}")
    A(f"v_lshrrev_b32 v{g_}, 4, v{V_LANE}")
    A(f"v_and_b32 v{r1}, 3, v{i_}"); A(f"v_lshlrev_b32 v{r1}, 6, v{r1}")
    A(f"v_lshrrev_b32 v{r2}, 2, v{i_}")
    A(f"v_lshl_add_u32 v{r1}, v{r2}, 4, v{r1}")
    A(f"v_mov_b32 v{big}, 0x800000")
    A(f"v_lshlrev_b32 v{r2}, 4, v{r2}")
    A(f"v_add_u32 v{r2}, 256, v{r2}")
    set_mask(A, 90, lanemask(lambda l: (l & 3) == 1))
    set_mask(A, 92, lanemask(lambda l: (l & 3) >= 2))
    A(f"v_mov_b32 v{t+6}, 320")
    A(f"v_cndmask_b32 v{r2}, v{r2}, v{t+6}, s[90:91]")
    A(f"v_cndmask_b32 v{r2}, v{r2}, v{big}, s[92:93]")
    A(f"s_sub_u32 s{S_T0}, 4, s{S_WV}")
    A(f"s_add_u32 s{S_T1}, s{S_WV}, 1")
    A(f"s_lshl_b32 s{S_T2}, s{S_WV}, 4")
    A(f"s_mul_i32 s{S_T3}, s{S_T0}, 336")
    A(f"v_subrev_u32 v{t+6}, s{S_T2}, v{g16}")
    A(f"v_add_u32 v{t+7}, s{S_T3}, v{g16}")
    A(f"v_cmp_le_u32 s[90:91], s{S_WV}, v{g_}")
    A(f"v_cmp_ge_u32 s[92:93], s{S_WV}, v{g_}")
    for k, R in enumerate((r1, r2)):
        lo, hi = KO + 2 * k, KO + 2 * k + 1
        A(f"v_mad_u32_u24 v{lo}, v{R}, s{S_T0}, v{t+6}")
        A(f"v_cndmask_b32 v{lo}, v{big}, v{lo}, s[90:91]")
        A(f"v_mad_u32_u24 v{hi}, v{R}, s{S_T1}, v{t+7}")
        A(f"v_cndmask_b32 v{hi}, v{big}, v{hi}, s[92:93]")
    A(f"s_lshl_b32 s{S_T0}, s{S_HG}, 2"); A(f"s_add_u32 s{S_T0}, s{S_T0}, s{S_WV}"); A(f"s_lshl_b32 s{S_T0}, s{S_T0}, 11")
    A(f"s_add_u32 s94, s{S_T0}, {WS_KV}")
    KR = V_KACC
    phi_rt(0)
    poll(A, vm, 'kvp', KV_POLL(), check_flags(A))
    ts(A, "kv_ok")
    for kind in range(4):
        A(f"buffer_load_dwordx4 {vr(KR + 4*kind, 4)}, v{KO + kind}, {WSD}, s{S_U0+1 if False else 94} offen sc1"); vm.issue('kvl')
    phi_rt(1)
    ts(A, "phi")
    vm.wait(A, 'kvl')
    KP = V_KACC + 24
    for k in range(8): A(f"v_cvt_pk_bf16_f32 v{KP+k}, v{KR+2*k}, v{KR+2*k+1}")
    A(f"s_lshl_b32 s{S_T0}, s{S_WV}, 11"); A(f"s_add_u32 s{S_T0}, s{S_T0}, {L_KVX}")
    A(f"v_add_u32 v2, s{S_T0}, v{V_P2}")
    A(f"ds_write_b128 v2, {vr(KP,4)}")
    A(f"ds_write_b128 v2, {vr(KP+4,4)} offset:1024")
    A(f"v_add_u32 v3, {L_KVX}, v{V_P2}")
    f_store_base(A, 0)
    A(f"v_lshlrev_b32 v9, 3, v{V_LANE}")
    CIN = V_M + 8
    A(f"v_mov_b32 v{CIN}, 0"); A(f"v_mov_b32 v{CIN+1}, 0x{f2u(EPS):x}"); A(f"v_mov_b32 v{CIN+2}, 0"); A(f"v_mov_b32 v{CIN+3}, 0")
    A("s_waitcnt lgkmcnt(0)")
    A("s_barrier")
    KO_ = V_KACC + 32
    for h in range(4):
        A(f"ds_read_b128 {vr(KO_ + 8*h, 4)}, v3 offset:{2048*h}")
        A(f"ds_read_b128 {vr(KO_ + 8*h + 4, 4)}, v3 offset:{2048*h + 1024}")
    gate_check(A, vm)
    A("s_waitcnt lgkmcnt(0)")
    ts(A, "kv_lds")
    DT = V_WF + 8
    OO = V_KACC
    def oc_mfma(rt):
        out = []
        for h in range(4):
            B = vr(V_QACC + 20*rt + 2*h, 4)
            D1 = DT + 32*rt + 4*h; D2 = DT + 32*rt + 16 + 4*h
            out.append(f"v_mfma_f32_16x16x32_bf16 {vr(D2,4)}, {vr(KO_ + 8*h + 4,4)}, {B}, {vr(CIN,4)}")
            out.append(f"v_mfma_f32_16x16x32_bf16 {vr(D1,4)}, {vr(KO_ + 8*h,4)}, {B}, 0")
        return out
    def oc_valu(rt):
        out = []
        D1 = lambda h: DT + 32*rt + 4*h
        D2 = lambda h: DT + 32*rt + 16 + 4*h
        O = OO + 12 * rt
        for h in range(4): out.append(f"v_rcp_f32 v{D2(h)+2}, v{D2(h)+1}")
        for h in range(4): out.append(f"v_mul_f32 v{D2(h)+2}, v{D2(h)+2}, v{V_G+rt}")
        for h in range(4):
            out.append(f"v_pk_mul_f32 {vr(D1(h),2)}, {vr(D1(h),2)}, {vr(D2(h)+2,2)} op_sel_hi:[1,0]")
            out.append(f"v_pk_mul_f32 {vr(D1(h)+2,2)}, {vr(D1(h)+2,2)}, {vr(D2(h)+2,2)} op_sel_hi:[1,0]")
            out.append(f"v_mul_f32 v{D2(h)}, v{D2(h)}, v{D2(h)+2}")
        for h in range(4):
            out.append(f"v_cvt_pk_bf16_f32 v{O+2*h}, v{D1(h)}, v{D1(h)+1}")
            out.append(f"v_cvt_pk_bf16_f32 v{O+2*h+1}, v{D1(h)+2}, v{D1(h)+3}")
        out.append(f"v_cvt_pk_bf16_f32 v{O+8}, v{D2(0)}, v{D2(1)}")
        out.append(f"v_cvt_pk_bf16_f32 v{O+9}, v{D2(2)}, v{D2(3)}")
        return out
    P2.early_poll()
    for m in oc_mfma(0): A(m)
    for m in oc_mfma(1): A(m)
    for x in oc_valu(0): A(x)
    f_stores(A, vm, OO, 0, 9)
    for x in oc_valu(1): A(x)
    f_stores(A, vm, OO + 12, 1, 9)
    ts(A, "o_stored")

def k1_B_mid(A, vm, M):
    L = "L1B_"
    for t in range(5):
        b = V_VACC + 8 * t
        A(f"v_cvt_pk_bf16_f32 v{b+3}, v{b+2}, v{b+3}")
        A(f"v_cvt_pk_bf16_f32 v{b+2}, v{b}, v{b+1}")
        A(f"v_cvt_pk_bf16_f32 v{b+4}, v{b+4}, v{b+5}")
        A(f"v_cvt_pk_bf16_f32 v{b+5}, v{b+6}, v{b+7}")
    for rt in range(2):
        b = V_KACC + 20 * rt
        for k in range(10):
            A(f"v_cvt_pk_bf16_f32 v{b+k}, v{b+2*k}, v{b+2*k+1}")
    A(f"v_lshlrev_b32 v2, 3, v{V_LANE}")
    A(f"s_cmp_eq_u32 s{S_WV}, 3"); A(f"s_cbranch_scc1 {L}hg")
    A(f"s_mul_i32 s{S_T0}, s{S_WV}, 5120"); A(f"s_add_u32 s{S_T0}, s{S_T0}, {L_HALO}")
    A(f"v_add_u32 v3, s{S_T0}, v2")
    for q in range(5):
        A(f"ds_write_b64 v3, {vr(V_KACC + 20 + 2*q, 2)} offset:{512*q}")
    for q in range(5):
        A(f"ds_write_b64 v3, {vr(V_VACC + 8*q + 4, 2)} offset:{512*(5+q)}")
    A(f"s_branch {L}hd")
    A(f"{L}hg:")
    A(f"s_lshl_b32 s{S_T0}, s{S_RB}, 3"); A(f"s_add_u32 s{S_T0}, s{S_T0}, s{S_HG}"); A(f"s_mul_i32 s{S_T0}, s{S_T0}, 5120")
    A(f"s_add_u32 s{S_T0}, s{S_T0}, {WS_HALO}")
    for q in range(5):
        A(f"buffer_store_dwordx2 {vr(V_KACC + 20 + 2*q, 2)}, v2, {WSD}, s{S_T0} offen offset:{512*q} sc1")
    A(f"s_add_u32 s{S_T1}, s{S_T0}, 2560")
    for q in range(5):
        A(f"buffer_store_dwordx2 {vr(V_VACC + 8*q + 4, 2)}, v2, {WSD}, s{S_T1} offen offset:{512*q} sc1")
    A(f"{L}hd:")
    vm.halo_marker = len(vm.ops)

def k1_B_end(A, vm, M, P2):
    L = "L1B_"
    KPREV = V_KACC + 10
    BIAS = V_M + 8
    ONES = V_M + 12
    MK = V_M + 16
    set_mask(A, SM_PAR, lanemask(lambda l: l & 1))
    set_mask(A, SM_C0, lanemask(lambda l: 4 * (l >> 4) + (l & 1) <= (l & 15)))
    set_mask(A, SM_C1, lanemask(lambda l: 4 * (l >> 4) + (l & 1) + 2 <= (l & 15)))
    for h, s in ((1, SM_GE1), (2, SM_GE2), (3, SM_GE3)):
        set_mask(A, s, lanemask(lambda l: (l >> 4) >= h))
    GE = {1: SM_GE1, 2: SM_GE2, 3: SM_GE3}
    A("s_barrier")
    ts(A, "Bbar")
    A("v_mov_b32 v2, 0xffff"); A("v_mov_b32 v3, 0xffff0000")
    A(f"v_cndmask_b32 v2, v2, v3, {sm(SM_PAR)}")
    A(f"v_cndmask_b32 v{MK}, v2, 0, {sm(SM_C0)}")
    A(f"v_cndmask_b32 v{MK+1}, 0, v2, {sm(SM_C0)}")
    A(f"v_cndmask_b32 v{MK+2}, v2, 0, {sm(SM_C1)}")
    A(f"v_cndmask_b32 v{MK+3}, 0, v2, {sm(SM_C1)}")
    for k in range(4): A(f"v_mov_b32 v{ONES+k}, 0x3f803f80")
    for k in range(4): A(f"v_mov_b32 v{BIAS+k}, 0")
    for rt in range(2):
        b = V_QACC + 20 * rt
        for k in range(10):
            A(f"v_cvt_pk_bf16_f32 v{b+k}, v{b+2*k}, v{b+2*k+1}")
    A(f"v_lshlrev_b32 v2, 3, v{V_LANE}")
    A(f"s_cmp_eq_u32 s{S_WV}, 0"); A(f"s_cbranch_scc1 {L}pg")
    A(f"s_mul_i32 s{S_T0}, s{S_WV}, 5120"); A(f"s_add_u32 s{S_T0}, s{S_T0}, {L_HALO - 5120}")
    A(f"v_add_u32 v3, s{S_T0}, v2")
    for q in range(5):
        A(f"ds_read_b64 {vr(KPREV + 2*q, 2)}, v3 offset:{512*q}")
    for q in range(5):
        A(f"ds_read_b64 {vr(V_VACC + 8*q, 2)}, v3 offset:{512*(5+q)}")
    A("s_waitcnt lgkmcnt(0)")
    A(f"s_branch {L}pd")
    A(f"{L}pg:")
    A(f"s_cmp_eq_u32 s{S_RB}, 0"); A(f"s_cbranch_scc1 {L}pz")
    poll(A, vm, 'kvp', KV_POLL(), check_flags(A))
    A(f"s_sub_u32 s{S_T3}, s{S_RB}, 1")
    A(f"s_lshl_b32 s{S_T0}, s{S_T3}, 3"); A(f"s_add_u32 s{S_T0}, s{S_T0}, s{S_HG}"); A(f"s_mul_i32 s{S_T0}, s{S_T0}, 5120")
    A(f"s_add_u32 s{S_T0}, s{S_T0}, {WS_HALO}")
    for q in range(5):
        A(f"buffer_load_dwordx2 {vr(KPREV + 2*q, 2)}, v2, {WSD}, s{S_T0} offen offset:{512*q} sc1")
    A(f"s_add_u32 s{S_T1}, s{S_T0}, 2560")
    for q in range(5):
        A(f"buffer_load_dwordx2 {vr(V_VACC + 8*q, 2)}, v2, {WSD}, s{S_T1} offen offset:{512*q} sc1")
    A("s_waitcnt vmcnt(0)")
    A(f"s_branch {L}pd")
    A(f"{L}pz:")
    for q in range(10): A(f"v_mov_b32 v{KPREV+q}, 0")
    for q in range(5):
        A(f"v_mov_b32 v{V_VACC+8*q}, 0"); A(f"v_mov_b32 v{V_VACC+8*q+1}, 0")
    for k in range(4): A(f"v_mov_b32 v{BIAS+k}, 0x{f2u(-1e30):x}")
    A(f"{L}pd:")
    A.flush_hazards()
    ts(A, "Bpd")
    gate_check(A, vm)
    for rt in range(2): A(f"v_sub_f32 v{V_G+rt}, 1.0, v{V_G+rt}")
    ts(A, "B_prev_ready")
    SC = (20 ** -0.5) * LOG2E
    A(f"s_mov_b32 s{S_C1}, 0x{f2u(SC):x}")
    f_store_base(A, 1)
    A(f"v_lshlrev_b32 v9, 3, v{V_LANE}")
    A.filler = P2.wfill
    T = V_WF
    QM = T; SP = T + 16; SCU = T + 32; X0 = T + 48; X1 = T + 52; MX = T + 56; PP = T + 60
    for rt in range(2):
        Q = V_QACC + 20 * rt
        KC = V_KACC + 20 * rt
        KP = KPREV if rt == 0 else V_KACC
        for h in range(4):
            for k in range(2):
                src = Q + 2 * h + k
                if h == 0: A(f"v_mov_b32 v{QM+4*h+k}, v{src}")
                else:      A(f"v_cndmask_b32 v{QM+4*h+k}, 0, v{src}, {sm(GE[h])}")
            for k in range(2):
                src = Q + 2 * (h + 1) + k
                if h == 3: A(f"v_mov_b32 v{QM+4*h+2+k}, v{src}")
                else:      A(f"v_cndmask_b32 v{QM+4*h+2+k}, v{src}, 0, {sm(GE[h+1])}")
        for h in range(4):
            Cb = vr(BIAS, 4) if rt == 0 else "0"
            A(f"v_mfma_f32_16x16x32_bf16 {vr(SP+4*h,4)}, {vr(KP+2*h,4)}, {vr(QM+4*h,4)}, {Cb}")
            A(f"v_mfma_f32_16x16x32_bf16 {vr(SCU+4*h,4)}, {vr(KC+2*h,4)}, {vr(QM+4*h,4)}, 0")
        for h in range(4):
            p, c = SP + 4 * h, SCU + 4 * h
            A(f"v_cndmask_b32 v{p}, v{p}, v{p+1}, {sm(SM_PAR)}")
            A(f"v_cndmask_b32 v{c}, v{c}, v{c+1}, {sm(SM_PAR)}")
            A(f"v_cndmask_b32 v{p+2}, v{p+2}, v{p+3}, {sm(SM_PAR)}")
            A(f"v_cndmask_b32 v{c+2}, v{c+2}, v{c+3}, {sm(SM_PAR)}")
            A(f"v_cndmask_b32 v{X0+h}, v{p}, v{c}, {sm(SM_C0)}")
            A(f"v_cndmask_b32 v{X1+h}, v{p+2}, v{c+2}, {sm(SM_C1)}")
            A(f"v_max_f32 v{MX+h}, v{X0+h}, v{X1+h}")
        a0, a1, a2, a3 = MX, MX + 1, MX + 2, MX + 3
        A(f"v_permlane32_swap_b32 v{a0}, v{a1}")
        A(f"v_permlane32_swap_b32 v{a2}, v{a3}")
        A(f"v_max_f32 v{a0}, v{a0}, v{a1}")
        A(f"v_max_f32 v{a2}, v{a2}, v{a3}")
        A(f"v_permlane16_swap_b32 v{a0}, v{a2}")
        A(f"v_max_f32 v{a0}, v{a0}, v{a2}")
        A(f"v_mul_f32 v{a0}, s{S_C1}, v{a0}")
        A(f"v_mov_b32 v{a2}, v{a0}")
        A(f"v_permlane16_swap_b32 v{a0}, v{a2}")
        A(f"v_mov_b32 v{a1}, v{a0}")
        A(f"v_mov_b32 v{a3}, v{a2}")
        A(f"v_permlane32_swap_b32 v{a0}, v{a1}")
        A(f"v_permlane32_swap_b32 v{a2}, v{a3}")
        for h in range(4):
            A(f"v_fma_f32 v{X0+h}, v{X0+h}, s{S_C1}, -v{MX+h}")
            A(f"v_fma_f32 v{X1+h}, v{X1+h}, s{S_C1}, -v{MX+h}")
        for h in range(4):
            A(f"v_exp_f32 v{X0+h}, v{X0+h}")
            A(f"v_exp_f32 v{X1+h}, v{X1+h}")
        for h in range(4):
            A(f"v_cvt_pk_bf16_f32 v{X0+h}, v{X0+h}, v{X0+h}")
            A(f"v_cvt_pk_bf16_f32 v{X1+h}, v{X1+h}, v{X1+h}")
        for h in range(4):
            p = PP + 4 * h
            A(f"v_and_b32 v{p}, v{X0+h}, v{MK}")
            A(f"v_and_b32 v{p+1}, v{X1+h}, v{MK+2}")
            A(f"v_and_b32 v{p+2}, v{X0+h}, v{MK+1}")
            A(f"v_and_b32 v{p+3}, v{X1+h}, v{MK+3}")
        for h in range(4):
            vo = 0 if rt == 0 else 2
            A(f"v_mfma_f32_16x16x32_bf16 {vr(SCU+4*h,4)}, {vr(ONES,4)}, {vr(PP+4*h,4)}, 0")
            A(f"v_mfma_f32_16x16x32_bf16 {vr(QM+4*h,4)}, {vr(V_VACC+8*h+vo,4)}, {vr(PP+4*h,4)}, 0")
            A(f"v_mfma_f32_16x16x32_bf16 {vr(SP+4*h,4)}, {vr(V_VACC+8*(h+1)+vo,4)}, {vr(PP+4*h,4)}, 0")
        for h in range(4):
            A(f"v_rcp_f32 v{MX+h}, v{SCU+4*h}")
        for h in range(4):
            A(f"v_mul_f32 v{MX+h}, v{MX+h}, v{V_G+rt}")
        for t in range(1, 4):
            A(f"v_cndmask_b32 v{X0+t}, v{MX+t-1}, v{MX+t}, {sm(GE[t])}")
        for t in range(5):
            if t == 0:   src = [QM + j for j in range(4)]; r = MX
            elif t == 4: src = [SP + 12 + j for j in range(4)]; r = MX + 3
            else:
                for j in range(4):
                    A(f"v_cndmask_b32 v{QM+4*t+j}, v{SP+4*(t-1)+j}, v{QM+4*t+j}, {sm(GE[t])}")
                src = [QM + 4 * t + j for j in range(4)]; r = X0 + t
            for j in range(4):
                A(f"v_mul_f32 v{src[j]}, v{src[j]}, v{r}")
            o = PP + 2 * t
            A(f"v_cvt_pk_bf16_f32 v{o}, v{src[0]}, v{src[1]}")
            A(f"v_cvt_pk_bf16_f32 v{o+1}, v{src[2]}, v{src[3]}")
        if rt == 1: P2.early_poll()
        f_stores(A, vm, PP, rt, 9)
        A("s_nop 1")
    A.filler = None
    ts(A, "o_stored")

class Phase2:
    V_ACC = 32
    V_OB = 112
    A_OA = 104
    V_OA2 = 192
    S_RT, S_OB, S_OA = 36, 40, 52
    S_FLO, S_FLP, S_OUT = 64, 65, 66
    V_L8, V_L8B, V_FA, V_LR, V_ST, V_LW = 10, 11, 12, 13, 14, 15
    def __init__(self, A, vm):
        self.A = A; self.vm = vm
        self.wlist = [(b, s, ct) for b in (0, 1) for s in range(5) for ct in range(5)]
        self.widx = {k: i for i, k in enumerate(self.wlist)}
        self.cnt = 0; self.issued = 0; self.allow = 0; self.every = WFILL
    def wreg(self, b, s, ct):
        f = self.widx[(b, s, ct)]
        return ar(160 + 4 * f, 4) if f < 24 else ar(4 * (f - 24), 4)
    def oa_reg(self, p, s, n=4, off=0):
        k = 5 * p + s
        return ar(self.A_OA + 4 * k + off, n) if k < 14 else vr(self.V_OA2 + 4 * (k - 14) + off, n)
    def ob_reg(self, p, s, n=4, off=0): return vr(self.V_OB + 4 * (5 * p + s) + off, n)
    def setup_w(self):
        A = self.A
        A(f"s_mul_i32 s{S_WPA}, s{S_CG}, 102400"); A(f"s_mul_i32 s{S_T1}, s{S_WV}, 25600"); A(f"s_add_u32 s{S_WPA}, s{S_WPA}, s{S_T1}")
        A(f"s_add_u32 s{S_WPA}, s{S_WPA}, {WS_WP}")
        A(f"s_add_u32 s{S_WPB}, s{S_WPA}, 819200")
    def wgroup(self):
        if not self.wlist or self.issued >= self.allow: return None
        b, s, ct = self.wlist.pop(0); self.issued += 1
        base = S_WPB if b == 0 else S_WPA
        g = []
        if ct == 0: g.append(f"s_add_u32 s71, s{base}, {5120*s}")
        if ct == 4: g.append(f"s_add_u32 s89, s{base}, {5120*s + 4096}")
        if ct < 4: g.append((f"buffer_load_dwordx4 {self.wreg(b,s,ct)}, v{V_P2}, {WSD}, s71 offen offset:{1024*ct} sc1", f"w{b}_{s}"))
        else:      g.append((f"buffer_load_dwordx4 {self.wreg(b,s,ct)}, v{V_P2}, {WSD}, s89 offen sc1", f"w{b}_{s}"))
        return g
    def wgroups(self, n):
        out = []
        for _ in range(n):
            g = self.wgroup()
            if g: out.append(g)
        return out
    def wload(self):
        A = self.A
        g = self.wgroup()
        if not g: return
        f = A.filler; A.filler = None
        for x in g:
            if isinstance(x, tuple): A(x[0]); self.vm.issue(x[1])
            else: A(x)
        A.filler = f
    def wfill(self):
        self.cnt += 1
        if self.cnt % self.every == 0: self.wload()
    def prep(self):
        A = self.A
        S_RT, S_OB, S_OA = self.S_RT, self.S_OB, self.S_OA
        A(f"s_lshl_b32 s90, s{S_RB}, 1"); A(f"s_add_u32 s90, s90, s{S_BR}"); A("s_lshl_b32 s90, s90, 3"); A(f"s_add_u32 s90, s90, s{S_HG}")
        A("s_lshl_b32 s90, s90, 2"); A(f"s_add_u32 s90, s90, s{S_WV}"); A("s_lshl_b32 s90, s90, 7"); A(f"s_add_u32 s{self.S_FLO}, s90, {WS_FLG + FL_OD}")
        for p in range(4):
            A(f"s_add_u32 s{S_RT+p}, s{S_WV}, {p+1}"); A(f"s_and_b32 s{S_RT+p}, s{S_RT+p}, 3")
            A(f"s_lshl_b32 s{S_T0}, s{S_RHO}, 2"); A(f"s_add_u32 s{S_T0}, s{S_T0}, s{S_RT+p}")
            A(f"s_mul_i32 s{S_T0}, s{S_T0}, 20480"); A(f"s_mul_i32 s{S_T1}, s{S_WV}, 5120")
            A(f"s_add_u32 s{S_OA+p}, s{S_T0}, s{S_T1}")
            if WS_F: A(f"s_add_u32 s{S_OA+p}, s{S_OA+p}, {WS_F}")
            A(f"s_add_u32 s{S_OB+p}, s{S_OA+p}, {128*20480}")
        A(f"v_lshlrev_b32 v{self.V_L8}, 3, v{V_LANE}")
        A(f"v_add_u32 v{self.V_L8B}, 2560, v{self.V_L8}")
        A(f"v_bfe_u32 v7, v{V_LANE}, 2, 1"); A("v_xor_b32 v7, 1, v7"); A("v_lshlrev_b32 v7, 5, v7")
        A(f"v_bfe_u32 v8, v{V_LANE}, 1, 1"); A("v_lshl_add_u32 v7, v8, 2, v7")
        A(f"v_and_b32 v8, 1, v{V_LANE}"); A("v_add_u32 v7, v8, v7")
        A(f"v_lshlrev_b32 v{self.V_FA}, 7, v7")
        A(f"s_lshl_b32 s{S_T0}, s{S_WV}, 3"); A(f"s_and_b32 s{S_T1}, s{S_RHO}, 1"); A(f"s_lshl_b32 s{S_T1}, s{S_T1}, 1"); A(f"s_add_u32 s{S_T0}, s{S_T0}, s{S_T1}")
        A(f"s_lshr_b32 s{S_T1}, s{S_RHO}, 1"); A(f"s_lshl_b32 s{S_T1}, s{S_T1}, 6"); A(f"s_add_u32 s{S_T0}, s{S_T0}, s{S_T1}")
        A(f"s_lshl_b32 s{S_T0}, s{S_T0}, 7")
        A(f"s_add_u32 s{self.S_FLP}, s{S_T0}, {WS_FLG + FL_OD}")
        A(f"s_mul_i32 s{S_T0}, s{S_WV}, 15360")
        A(f"v_add_u32 v{self.V_LR}, s{S_T0}, v{V_P2}")
        A(f"v_and_b32 v{self.V_ST}, 15, v{V_LANE}"); A(f"v_mul_u32_u24 v{self.V_ST}, 1280, v{self.V_ST}")
        A(f"v_lshrrev_b32 v9, 4, v{V_LANE}"); A(f"v_lshl_add_u32 v{self.V_ST}, v9, 3, v{self.V_ST}")
        A(f"s_lshl_b32 s{S_T0}, s{S_RHO}, 2"); A(f"s_add_u32 s{S_T0}, s{S_T0}, s{S_WV}"); A(f"s_mul_i32 s{self.S_OUT}, s{S_T0}, 20480")
        A(f"s_mul_i32 s{S_T0}, s{S_CG}, 160"); A(f"s_add_u32 s{self.S_OUT}, s{self.S_OUT}, s{S_T0}")
        for p in range(3):
            A(f"s_mul_i32 s{S_T0}, s{S_RT+p}, 15360"); A(f"s_add_u32 s{S_T0}, s{S_T0}, {p*5120}")
            A(f"v_add_u32 v{self.V_LW+p}, s{S_T0}, v{V_P2}")
    def PL(self): return f"buffer_load_dwordx2 {vr(V_POLL,2)}, v{self.V_FA}, {WSD}, s{self.S_FLP} offen sc1"
    def early_poll(self):
        self.A(self.PL()); self.vm.issue('odp0')
    def oloads(self, vm, br):
        A = self.A
        base = self.S_OB if br else self.S_OA
        reg = self.ob_reg if br else self.oa_reg
        order = [(p, s) for s in range(5) for p in range(4)] if br else [(p, s) for p in range(4) for s in range(5)]
        for p, s in order:
            if s < 4:
                off = (0, 1024, 2560, 3584)[s]
                A(f"buffer_load_dwordx4 {reg(p,s)}, v{V_P2}, {WSD}, s{base+p} offen offset:{off} sc1"); vm.issue(f"o{br}_{p}_{s}")
            else:
                A(f"buffer_load_dwordx2 {reg(p,s,2,0)}, v{self.V_L8}, {WSD}, s{base+p} offen offset:2048 sc1"); vm.issue(f"o{br}_{p}_{s}")
                A(f"buffer_load_dwordx2 {reg(p,s,2,2)}, v{self.V_L8B}, {WSD}, s{base+p} offen offset:2048 sc1"); vm.issue(f"o{br}_{p}_{s}")
    def acc(self, p, ct): return self.V_ACC + 20*p + 4*ct
    def bstep(self, vm, s):
        A = self.A
        for p in range(4):
            vm.wait(A, f"o1_{p}_{s}")
            for ct in range(5):
                a = vr(self.acc(p, ct), 4)
                A(f"v_mfma_f32_16x16x32_bf16 {a}, {self.wreg(0,s,ct)}, {self.ob_reg(p,s)}, {'0' if s == 0 else a}")
    def run(self):
        import copy
        A, vm = self.A, self.vm
        A.filler = None
        self.allow = 50
        if self.wlist: print("WARNING leftover W loads", len(self.wlist))
        while self.wlist: self.wload()
        mB = lanemask(lambda l: ((l >> 2) & 1) == 0)
        mA = lanemask(lambda l: ((l >> 2) & 1) == 1)
        PL = self.PL()
        def chk(m):
            check_flags(A, m)()
        def own_flag():
            A(f"v_mov_b32 v{V_NON}, s{S_NON}"); A(f"v_mov_b32 v{V_NON+1}, s{S_NON+1}")
            flag_store(A, self.S_FLO)
        LATE, V1, V2, J = "LP2_late", "LP2_v1", "LP2_v2", "LP2_j"
        tag = S_TAG[0]
        LATE += tag; V1 += tag; V2 += tag; J += tag
        vm.wait(A, 'odp0')
        chk(mB)
        A(f"s_cbranch_scc0 {LATE}")
        chk(mA)
        A(f"s_cbranch_scc0 {LATE}_eb")
        v = copy.deepcopy(vm)
        self.oloads(v, 1); self.oloads(v, 0)
        v.wait(A, 'ost'); ts(A, "drained")
        own_flag(); v.issue('x')
        vm1 = v
        A(f"s_branch {V1}")
        A(f"{LATE}_eb:"); A.flush_hazards()
        v = copy.deepcopy(vm)
        self.oloads(v, 1); A(PL); v.issue('odp1')
        v.wait(A, 'ost'); ts(A, "drained", same=True)
        own_flag(); v.issue('x')
        vm2 = v
        A(f"s_branch {V2}")
        A(f"{LATE}:"); A.flush_hazards()
        A("s_waitcnt vmcnt(0)"); ts(A, "drained", same=True)
        own_flag()
        A(PL); A("s_waitcnt vmcnt(0)")
        poll(A, vm, 'odp0', PL, lambda: chk(mB), pre_wait=False)
        chk(mA)
        A(f"s_cbranch_scc0 {LATE}_lb")
        v = VM(); self.oloads(v, 1); self.oloads(v, 0); A(PL); v.issue('x')
        assert v.ops == vm1.ops[-len(v.ops):]
        A(f"s_branch {V1}")
        A(f"{LATE}_lb:"); A.flush_hazards()
        v = VM(); self.oloads(v, 1); A(PL); v.issue('odp1')
        A(f"buffer_load_dwordx2 v[2:3], v{self.V_FA}, {WSD}, s{self.S_FLP} offen sc1"); v.issue('x')
        assert v.ops == vm2.ops[-len(v.ops):]
        A(f"{V2}:"); A.flush_hazards()
        ts(A, "pollB")
        v = vm2
        for s in range(4): self.bstep(v, s)
        v.wait(A, 'odp1')
        chk(mA)
        A(f"s_cbranch_scc0 {V2}_n")
        va = VM(); self.oloads(va, 0); A(PL); va.issue('x')
        ts(A, "pollA")
        for p in range(4):
            for ct in range(5):
                a = vr(self.acc(p, ct), 4)
                A(f"v_mfma_f32_16x16x32_bf16 {a}, {self.wreg(0,4,ct)}, {self.ob_reg(p,4)}, {a}")
        A(f"s_branch {J}")
        A(f"{V2}_n:"); A.flush_hazards()
        for p in range(4):
            for ct in range(5):
                a = vr(self.acc(p, ct), 4)
                A(f"v_mfma_f32_16x16x32_bf16 {a}, {self.wreg(0,4,ct)}, {self.ob_reg(p,4)}, {a}")
        A(PL); A("s_waitcnt vmcnt(0)")
        poll(A, vm, 'odp0', PL, lambda: chk(mA), pre_wait=False)
        vb = VM(); self.oloads(vb, 0); A(PL); vb.issue('x')
        ts(A, "pollA", same=True)
        A(f"s_branch {J}")
        A(f"{V1}:"); A.flush_hazards()
        ts(A, "pollB", same=True); ts(A, "pollA", same=True)
        for s in range(5): self.bstep(vm1, s)
        A(f"{J}:"); A.flush_hazards()
        ts(A, "bpart")
        vm = va
        acc = self.acc
        RD = self.V_OB
        fill = []
        for p in range(4):
            k = 0
            for s in range(5):
                vm.wait(A, f"o0_{p}_{s}")
                for ct in range(5):
                    a = vr(acc(p, ct), 4)
                    A(f"v_mfma_f32_16x16x32_bf16 {a}, {self.wreg(1,s,ct)}, {self.oa_reg(p,s)}, {a}")
                    if fill and s >= 1: A(fill.pop(0))
                if p == 3 and s == 1:
                    assert not fill
                    A("s_waitcnt lgkmcnt(0)")
                    A("s_barrier")
                    ts(A, "apart")
                    fill = [f"ds_read_b128 {vr(RD + 20*sl + 4*ct, 4)}, v{self.V_LR} offset:{(sl*5 + ct)*1024}" for ct in range(5) for sl in range(3)]
            for x in fill: A(x)
            fill = [f"ds_write_b128 v{self.V_LW+p}, {vr(acc(p, ct), 4)} offset:{1024*ct}" for ct in range(5)] if p < 3 else []
        OUTD = f"s[{SRD_OUT}:{SRD_OUT+3}]"
        for ct in range(5):
            A(f"s_waitcnt lgkmcnt({12 - 3*ct})")
            for sl in range(3):
                for k in (0, 2):
                    x = vr(acc(3, ct) + k, 2)
                    A(f"v_pk_add_f32 {x}, {x}, {vr(RD + 20*sl + 4*ct + k, 2)}")
            a = acc(3, ct)
            A(f"v_cvt_pk_bf16_f32 v{a}, v{a}, v{a+1}")
            A(f"v_cvt_pk_bf16_f32 v{a+1}, v{a+2}, v{a+3}")
            A(f"buffer_store_dwordx2 {vr(a, 2)}, v{self.V_ST}, {OUTD}, s{self.S_OUT} offen offset:{32*ct}")

S_TAG = ['']
class Asm3(Asm):
    def __init__(self):
        super().__init__(); self.filler = None
    def I(self, text):
        ins = super().I(text)
        if self.filler and ins.kind in ('valu', 'trans', 'mfma') and not text.startswith('v_cmp') :
            f = self.filler
            f()
        return ins

def kdesc(name, vgpr, accum, lds=0):
    return f""".amdhsa_kernel {name}
  .amdhsa_next_free_vgpr {vgpr}
  .amdhsa_next_free_sgpr 102
  .amdhsa_accum_offset {accum}
  .amdhsa_group_segment_fixed_size 0
  .amdhsa_kernarg_size 80
  .amdhsa_user_sgpr_count 2
  .amdhsa_user_sgpr_kernarg_segment_ptr 1
  .amdhsa_system_sgpr_workgroup_id_x 1
.end_amdhsa_kernel
"""

HEADER = open('cdna_kernels/' + NAME + '.s.ref').read().split('; Override launch')[0]

def main():
    args = [a for a in sys.argv[1:] if not a.startswith('--')]
    out = args[0] if args else 'cdna_kernels/' + NAME + '.s'
    A = Asm3()
    gen_k1(A)
    txt = HEADER + "".join(l + "\n" for l in TSN)
    txt += f"; @launch grid=(256,1,1) block=(256,1,1) lds={K1_LDS}\n"
    txt += '.amdgcn_target "amdgcn-amd-amdhsa--gfx950"\n.text\n'
    txt += A.text()
    txt += '.section .rodata,"a"\n.p2align 6\n'
    txt += kdesc(K1, 512, 256)
    open(out, 'w').write(txt)

if __name__ == '__main__':
    main()
```
